```python
import torch

def _softmax(x, axis=-1):
    return torch.softmax(x, dim=axis)
def _gelu(x):
    return torch.nn.functional.gelu(x, approximate="tanh")
def _silu(x):
    return torch.nn.functional.silu(x)
def _sigmoid(x):
    return torch.sigmoid(x)
def _layernorm(x, axis=-1, eps=1e-5):
    m = x.mean(dim=axis, keepdim=True)
    v = x.var(dim=axis, keepdim=True, unbiased=False)
    return (x - m) / torch.sqrt(v + eps)
def _scatter_add(tgt, idx, src, axis=0):
    return tgt.clone().index_add_(axis, idx, src)
def _segment_sum(src, seg, n):
    out = torch.zeros((n,) + src.shape[1:], dtype=src.dtype)
    return out.index_add_(0, seg, src)
def _pad(x, pw):
    flat = tuple(v for pair in reversed(pw) for v in pair)
    return torch.nn.functional.pad(x, flat)

kernel_name = 'sequential_preLN__spectral_gfnet__mixer_channel_mlp__prompt'

def setup_inputs():

    _w = (lambda a: (lambda t: t.to(torch.bfloat16) if t.is_floating_point() else t)(torch.as_tensor(a)))
    def _A_setup():
        B, S, D = 1, 2048, 512
        Df = D // 2 + 1
        return {
            "x": _w((lambda *s: torch.randn(*s, dtype=torch.bfloat16) * 0.05)(B, S, D)),
            "w_r": _w((lambda *s: torch.randn(*s, dtype=torch.bfloat16) * 0.8)(S, Df) * 0.02),
            "w_i": _w((lambda *s: torch.randn(*s, dtype=torch.bfloat16) * 0.8)(S, Df) * 0.02),
        }
    _A_in = _A_setup()

    def _B_setup():
        B, S, D, F = 1, 2048, 512, 1792
        return {
            "x": _w((lambda *s: torch.randn(*s, dtype=torch.bfloat16) * 0.05)(B, S, D)),
            "w1": _w((lambda *s: torch.randn(*s, dtype=torch.bfloat16) * 0.8)(D, F) * (D ** -0.5)),
            "b1": _w((lambda *s: torch.randn(*s, dtype=torch.bfloat16) * 0.4)(F)),
            "w2": _w((lambda *s: torch.randn(*s, dtype=torch.bfloat16) * 0.05)(F, D) * (F ** -0.5)),
            "b2": _w((lambda *s: torch.randn(*s, dtype=torch.bfloat16) * 0.05)(D)),
        }
    _B_in = _B_setup()

    return {
        "A_x": _A_in["x"],
        "A_w_r": _A_in["w_r"],
        "A_w_i": _A_in["w_i"],
        "B_x": _B_in["x"],
        "B_w1": _B_in["w1"],
        "B_b1": _B_in["b1"],
        "B_w2": _B_in["w2"],
        "B_b2": _B_in["b2"],
    }

def reference(A_x, A_w_r, A_w_i, B_x, B_w1, B_b1, B_w2, B_b2):
    def _A_ref(x, w_r, w_i):
        B, S, D = x.shape
        X = (lambda x, axes=(-2,-1): torch.fft.rfft2(x.float(), dim=axes))(x, axes=(-2, -1))
        W = w_r + 1j * w_i
        X = X * W
        y = (lambda x, s, axes=(-2,-1): torch.fft.irfft2(x, s=s, dim=axes).to(torch.bfloat16))(X, (S, D), axes=(-2, -1))
        return y

    def _B_ref(x, w1, b1, w2, b2):
        y = _layernorm(x, axis=-1)
        h = _gelu(torch.einsum("bsd,df->bsf", y, w1) + b1)
        return torch.einsum("bsf,fd->bsd", h, w2) + b2

    x = A_x
    h = x + _A_ref(_layernorm(x, axis=-1), A_w_r, A_w_i)
    h2 = h + _B_ref(_layernorm(h, axis=-1), B_w1, B_b1, B_w2, B_b2)
    return h2
```

```python
import re

TRANS = ("v_exp_f32", "v_log_f32", "v_rcp_f32", "v_rsq_f32", "v_sqrt_f32", "v_sin_f32", "v_cos_f32")
RMW = ("v_fmac_f32", "v_dot2c_f32_bf16")
REG_RE = re.compile(r"^-?(?:abs\()?([vas])(\d+|\[(\d+):(\d+)\])\)?$")

def regs_of(tok):
    tok = tok.strip()
    if tok in ("vcc", "exec"):
        return [(tok, 0), (tok, 1)]
    if tok in ("vcc_lo", "exec_lo"): return [(tok[:-3], 0)]
    if tok in ("vcc_hi", "exec_hi"): return [(tok[:-3], 1)]
    if tok == "m0": return [("m0", 0)]
    m = REG_RE.match(tok)
    if not m: return []
    k = m.group(1)
    if m.group(3) is not None:
        return [(k, r) for r in range(int(m.group(3)), int(m.group(4)) + 1)]
    return [(k, int(m.group(2)))]

class Ins:
    __slots__ = ("text", "op", "dst", "src", "kind", "passes", "srcC", "srcAB", "dpp", "wide_data", "nstates")

def parse(text):
    I = Ins(); I.text = text
    t = text.split(";")[0].strip()
    sp = t.split(None, 1)
    op = sp[0]; I.op = op
    rest = sp[1] if len(sp) > 1 else ""
    toks = []; depth = 0; cur = ""
    for ch in rest:
        if ch in "[(": depth += 1
        if ch in "])": depth -= 1
        if ch == "," and depth == 0: toks.append(cur.strip()); cur = ""
        else: cur += ch
    if cur.strip(): toks.append(cur.strip())
    mods = ""
    if toks:
        p = toks[-1].split(None, 1)
        toks[-1] = p[0]
        if len(p) > 1: mods = p[1]
    I.dst = []; I.src = []; I.passes = 0; I.srcC = []; I.srcAB = []; I.wide_data = []; I.nstates = 1
    I.dpp = ("quad_perm" in mods or "row_" in mods) and op.startswith("v_")
    R = [regs_of(x) for x in toks]
    flat = lambda L: [r for x in L for r in x]
    if op.startswith("v_mfma"):
        I.kind = "mfma"; I.passes = 8 if "32x32" in op else 4
        I.dst = R[0]; I.srcAB = R[1] + R[2]; I.srcC = R[3]; I.src = I.srcAB + I.srcC
    elif op.startswith("v_permlane"):
        I.kind = "perml"; I.dst = R[0] + R[1]; I.src = R[0] + R[1]
    elif op.startswith("v_readlane") or op.startswith("v_readfirstlane"):
        I.kind = "rdlane"; I.dst = R[0]; I.src = flat(R[1:])
    elif op.startswith("v_writelane"):
        I.kind = "valu"; I.dst = R[0]; I.src = flat(R)
    elif op.startswith("v_"):
        base = re.sub(r"_(e32|e64|dpp|sdwa)$", "", op)
        I.kind = "trans" if base in TRANS else ("dot" if base.startswith("v_dot") else "valu")
        I.dst = R[0]; I.src = flat(R[1:])
        if base in RMW: I.src += R[0]
        if base.startswith("v_add_co") or base.startswith("v_addc_co"): I.dst = R[0] + R[1]; I.src = flat(R[2:])
        if I.dpp: I.src += R[0]
    elif op.startswith("buffer_load"):
        I.kind = "vmem"
        if re.search(r"\blds\b", mods):
            I.src = flat(R) + [("m0", 0)]; I.kind = "vmem_lds"
        else:
            I.dst = R[0]; I.src = flat(R[1:])
    elif op.startswith("buffer_store") or op.startswith("buffer_atomic"):
        I.kind = "vmem"; I.src = flat(R)
        if "x4" in op or "x3" in op: I.wide_data = R[0]
    elif op.startswith("ds_read"):
        I.kind = "ds"; I.dst = R[0]; I.src = flat(R[1:])
    elif op.startswith("ds_write"):
        I.kind = "ds"; I.src = flat(R)
    elif op == "s_nop":
        I.kind = "nop"; I.nstates = int(toks[0], 0) + 1
    elif op.startswith("s_cmp") or op.startswith("s_bitcmp"):
        I.kind = "salu"; I.src = flat(R)
    elif op in ("s_waitcnt", "s_barrier", "s_sleep", "s_setprio", "s_endpgm", "s_branch") or op.startswith("s_cbranch"):
        I.kind = "sctl"
        if op in ("s_cbranch_vccnz", "s_cbranch_vccz"): I.src = [("vcc", 0), ("vcc", 1)]
    elif op.startswith("s_load") or op in ("s_memtime", "s_memrealtime"):
        I.kind = "smem"; I.dst = R[0]; I.src = flat(R[1:])
    elif op.startswith("s_"):
        I.kind = "salu"; I.dst = R[0]; I.src = flat(R[1:])
        if op == "s_and_saveexec_b64": I.dst = I.dst + [("exec", 0), ("exec", 1)]
    else:
        raise ValueError("unknown op " + text)
    return I

VALUK = ("valu", "trans", "dot", "perml", "rdlane")

def need(p, c):
    n = 0
    pd = set(p.dst)
    vec = lambda S: {r for r in S if r[0] in "va"}
    sc = lambda S: {r for r in S if r[0] in ("s", "vcc", "exec")}
    if p.kind in VALUK:
        pv = vec(pd)
        if pv:
            if c.kind == "mfma" and pv & set(c.src): n = max(n, 2)
            if c.kind in VALUK and c.dpp and pv & set(c.src): n = max(n, 2)
            if c.kind == "perml" and pv & set(c.src): n = max(n, 2)
            if c.kind == "rdlane" and pv & set(c.src): n = max(n, 1)
            if p.kind == "trans" and c.kind in VALUK + ("mfma",) and pv & set(c.src): n = max(n, 1)
            if p.kind == "dot" and pv & (set(c.src) | set(c.dst)):
                same = c.op == p.op and (pv & set(c.dst)) and not (pv & (set(c.src) - set(c.dst)))
                if not same: n = max(n, 3)
        ps = sc(pd)
        if ps:
            if c.kind in ("vmem", "vmem_lds") and ps & set(c.src): n = max(n, 5)
            if c.kind in VALUK + ("mfma",) and ps & set(c.src): n = max(n, 4 if c.kind == "rdlane" or c.op.startswith("v_writelane") else 2)
            if ("exec", 0) in ps and c.kind in VALUK + ("mfma",): n = max(n, 5)
    if p.kind == "mfma":
        big = p.passes == 8
        if c.kind == "mfma":
            if pd & set(c.srcAB): n = max(n, 12 if big else 8)
            if pd & set(c.srcC):
                if not (set(c.srcC) == pd and c.passes == p.passes): n = max(n, 10 if big else 6)
            if pd & set(c.dst) and not (set(c.dst) == pd and set(c.srcC) == pd and c.passes == p.passes):
                n = max(n, 10 if big else 6)
        elif c.kind in VALUK + ("vmem", "vmem_lds", "ds"):
            if pd & (set(c.src) | set(c.dst)): n = max(n, 12 if big else 8)
            if c.kind in VALUK and set(p.srcC) & set(c.dst): n = max(n, 7 if big else 3)
    if p.wide_data:
        if set(p.wide_data) & set(c.dst): n = max(n, 2 if c.kind in VALUK + ("mfma",) else 1)
    if p.kind == "salu" and ("m0", 0) in pd and c.kind == "vmem_lds": n = max(n, 1)
    return n

class Emit:
    def __init__(self):
        self.out = []
        self.hist = []
        self.uid = 0
        self.vm = []
        self.lg = []
        self.ool = []
        self.nnop = 0
    def raw(self, line): self.out.append(line)
    def comment(self, s): self.out.append("    ; " + s)
    def newlabel(self, base="L"):
        self.uid += 1
        return f"{base}_{self.uid}"
    def label(self, name, fence=False):
        self.out.append(name + ":")
        if fence: self.fence()
    def fence(self):
        self("s_nop 7"); self("s_nop 4")
    def one(self, text, tag=None):
        I = parse(text)
        dist = 0; req = 0
        for p in reversed(self.hist):
            k = need(p, I) - dist
            if k > req: req = k
            dist += p.nstates
            if dist >= 20: break
        while req > 0:
            k = min(req, 8)
            nop = parse(f"s_nop {k-1}")
            self.out.append(f"    s_nop {k-1}"); self.hist.append(nop); self.nnop += k
            req -= k
        self.out.append("    " + text)
        self.hist.append(I)
        if len(self.hist) > 64: self.hist = self.hist[-40:]
        if I.kind in ("vmem", "vmem_lds"):
            self.vm.append(tag)
        elif I.kind == "ds":
            self.lg.append(tag)
        elif I.op == "s_waitcnt":
            m = re.search(r"vmcnt\((\d+)\)", text)
            if m:
                n = int(m.group(1))
                if len(self.vm) > n: self.vm = self.vm[len(self.vm)-n:] if n else []
            m = re.search(r"lgkmcnt\((\d+)\)", text)
            if m:
                n = int(m.group(1))
                if len(self.lg) > n: self.lg = self.lg[len(self.lg)-n:] if n else []
    def __call__(self, text, tag=None):
        for l in text.split("\n"):
            l = l.strip()
            if not l: continue
            if l.startswith(";"): self.out.append("    " + l); continue
            self.one(l, tag)
    def _cnt(self, lst, tags):
        if not isinstance(tags, (list, tuple, set)): tags = [tags]
        idx = -1
        for i, t in enumerate(lst):
            if t in tags: idx = i
        return None if idx < 0 else len(lst) - 1 - idx
    def wait(self, vm=None, lg=None):
        parts = []
        if vm is not None:
            n = 0 if vm == "all" else self._cnt(self.vm, vm)
            if n is not None and (vm == "all" or True): parts.append(f"vmcnt({min(n,63)})")
        if lg is not None:
            n = 0 if lg == "all" else self._cnt(self.lg, lg)
            if n is not None: parts.append(f"lgkmcnt({min(n,15)})")
        if parts: self("s_waitcnt " + " ".join(parts))
    def text(self):
        return "\n".join(self.out) + "\n" + "\n".join(self.ool) + ("\n" if self.ool else "")

def v(a, n=1): return f"v{a}" if n == 1 else f"v[{a}:{a+n-1}]"
def a(x, n=1): return f"a{x}" if n == 1 else f"a[{x}:{x+n-1}]"
def s(x, n=1): return f"s{x}" if n == 1 else f"s[{x}:{x+n-1}]"
```

```python
import sys, math
from emit import Emit, v, a, s
KNAME = "sequential_preLN__spectral_gfnet__mixer_channel_mlp__prompt_kernel"
MB = 1 << 20
X1, X2, WT, LN2, HR, HB = 0, 2*MB, 4*MB, 6*MB, 8*MB, 10*MB
F1 = 18*MB; F2 = F1 + 16384; EP = F1 + 65536; PROF = 19*MB; WS_SIZE = 20*MB
L_W1, L_ST, L_SA, L_SB, L_END = 0, 114688, 147456, 155648, 163840
SX, SWS, SW1, SW2, SOUT, SWR, SWI, SB1, SB2 = 4, 8, 12, 16, 20, 24, 28, 32, 36
KA = 40
sJ, sT, sG, sMU, sP, sW, sTOK, sTO = 62, 63, 64, 65, 66, 67, 68, 69
t0, t1, t2, t3, t4, t5, t6, t7 = 70, 71, 72, 73, 74, 75, 76, 77
sMASK, sONES = 78, 79
sSTAMP = 82
vTID, vL, vN, vQ = 0, 1, 2, 3
vGA, vL16, vA0, vA1, vA2, vA3, vA4, vA5, vT0, vT1, vT2, vT3 = 4, 5, 6, 7, 8, 9, 10, 11, 12, 13, 14, 15
F32 = 16
TWA = 56
XC = 72
OOB = 0x7ffffff0

def f32bits(x):
    import struct
    return struct.unpack("<I", struct.pack("<f", x))[0]
def lit(x): return hex(f32bits(x))

class K:
    def __init__(self, prof=False, stop=None, opts=None):
        self.E = Emit(); self.prof = prof; self.stop = stop; self.nstamp = 0; self.names = []
        self.o = dict(opts or {})
    def stamp(self, name):
        if not self.prof: return
        E = self.E
        assert self.nstamp < 16
        E(f"s_memrealtime s[{sSTAMP}:{sSTAMP+1}]")
        E("s_waitcnt lgkmcnt(0)")
        E(f"s_mov_b32 s{84+self.nstamp}, s{sSTAMP}")
        self.names.append(name); self.nstamp += 1
    def srd(self, dst, base, nbytes):
        E = self.E
        E(f"s_mov_b32 s{dst}, s{base}"); E(f"s_mov_b32 s{dst+1}, s{base+1}")
        E(f"s_mov_b32 s{dst+2}, {hex(nbytes)}"); E(f"s_mov_b32 s{dst+3}, 0x00020000")
    def checked(self, loads, regs, tag, tmp=vT0, ref=None):
        E = self.E
        lr, lc = E.newlabel("L_retry"), E.newlabel("L_cont")
        def test(emit):
            if ref is None:
                R = list(regs)
                if len(R) == 1: emit(f"v_cmp_eq_u32 vcc, -1, v{R[0]}"); return
                emit(f"v_max3_u32 v{tmp}, v{R[0]}, v{R[1]}, v{R[2] if len(R) > 2 else R[1]}"); R = R[3:]
                while R:
                    emit(f"v_max3_u32 v{tmp}, v{tmp}, v{R[0]}, v{R[1] if len(R) > 1 else R[0]}"); R = R[2:]
                emit(f"v_cmp_eq_u32 vcc, -1, v{tmp}")
            else:
                emit(f"v_cmp_ne_u32 vcc, s{ref}, v{regs[0]}")
        E.wait(vm=tag)
        test(E)
        E(f"s_cbranch_vccnz {lr}")
        E.label(lc)
        o = [f"{lr}:", "    s_nop 7", "    s_nop 7", f"    s_sub_u32 s{sTO}, s{sTO}, 1", f"    s_cbranch_scc1 {lr}_to"]
        o += ["    " + l for l in loads]
        o += ["    s_waitcnt vmcnt(0)"]
        test(lambda t: o.append("    " + t))
        o += [f"    s_cbranch_vccnz {lr}", "    s_nop 7", f"    s_branch {lc}",
              f"{lr}_to:", f"    s_mov_b32 s{sTO}, 0", "    s_nop 7", f"    s_branch {lc}"]
        E.ool += o
    def sincos(self, ang, c, sn, tmp):
        E = self.E
        E(f"v_fract_f32 v{tmp}, v{ang}")
        E(f"v_cos_f32 v{c}, v{tmp}")
        E(f"v_sin_f32 v{sn}, v{tmp}")
    def cmul_pk(self, dr, di, xr, xi, c, sn, t, conj):
        E = self.E
        E(f"v_pk_mul_f32 {v(t,2)}, {v(xi,2)}, {v(sn,2)}")
        E(f"v_pk_mul_f32 {v(t+2,2)}, {v(xr,2)}, {v(sn,2)}")
        n = " neg_lo:[0,0,1] neg_hi:[0,0,1]"
        E(f"v_pk_fma_f32 {v(dr,2)}, {v(xr,2)}, {v(c,2)}, {v(t,2)}" + (n if conj else ""))
        E(f"v_pk_fma_f32 {v(di,2)}, {v(xi,2)}, {v(c,2)}, {v(t+2,2)}" + ("" if conj else n))
    def ln_reduce(self, sa, qa, sb, qb, R, fill=()):
        E = self.E; fill = list(fill)
        def f(n=1):
            for _ in range(n):
                if fill: E(fill.pop(0))
        f(2)
        E(f"v_permlane32_swap_b32 v{sa}, v{sb}")
        E(f"v_permlane32_swap_b32 v{qa}, v{qb}")
        E(f"v_add_f32 v{sa}, v{sa}, v{sb}")
        E(f"v_add_f32 v{qa}, v{qa}, v{qb}")
        f(2)
        E(f"v_permlane16_swap_b32 v{sa}, v{qa}")
        E(f"v_add_f32 v{sa}, v{sa}, v{qa}")
        for r in (8, 4, 2, 1):
            f(2)
            E(f"v_add_f32_dpp v{sa}, v{sa}, v{sa} row_ror:{r} row_mask:0xf bank_mask:0xf")
        E(f"v_mov_b32 v{qa}, v{sa}")
        f(2)
        E(f"v_permlane16_swap_b32 v{sa}, v{qa}")
        E(f"v_mul_f32 v{sa}, {lit(1/512)}, v{sa}")
        E(f"v_mul_f32 v{sb}, v{sa}, v{sa}")
        E(f"v_fma_f32 v{qa}, v{qa}, s{t7}, -v{sb}")
        E(f"v_max_f32 v{qa}, 0, v{qa}")
        E(f"v_add_f32 v{qa}, {lit(1e-5)}, v{qa}")
        E(f"v_rsq_f32 v{R}, v{qa}")
        f(1)
        E(f"v_mul_f32 v{R+1}, v{sa}, v{R}")
        E(f"v_sub_f32 v{R+1}, 0, v{R+1}")
        E(f"v_mov_b32 v{R+2}, v{R}")
        E(f"v_mov_b32 v{R+3}, v{R+1}")
        f(2)
        E(f"v_permlane32_swap_b32 v{R}, v{R+2}")
        E(f"v_permlane32_swap_b32 v{R+1}, v{R+3}")
        f(len(fill))
    def mm16(self, d, x, y, first):
        self.E(f"v_mfma_f32_16x16x32_bf16 {v(d,4)}, {v(x,4)}, {v(y,4)}, {'0' if first else v(d,4)}")
    def f32w(self, T, p, win):
        return F32 + (T*2+p)*10 + {"fi": 0, "fr": 2, "ii": 4, "ir": 6}[win]
    def const_f32(self):
        E = self.E; c = 200; sn = 204; ang = 208; tmp = 209; st = 210
        for T in range(2):
            E(f"v_lshlrev_b32 v{st}, 1, v{vN}")
            if T: E(f"v_add_u32 v{st}, 1, v{st}")
            E(f"v_cvt_f32_u32 v{st}, v{st}")
            E(f"v_mul_f32 v{st}, {lit(1/32)}, v{st}")
            for p in range(2):
                E(f"v_lshlrev_b32 v{ang}, 3, v{vQ}")
                if p: E(f"v_add_u32 v{ang}, 1, v{ang}")
                E(f"v_cvt_f32_u32 v{ang}, v{ang}")
                E(f"v_mul_f32 v{ang}, v{ang}, v{st}")
                for i in range(4):
                    if i: E(f"v_fma_f32 v{ang}, v{st}, 2.0, v{ang}")
                    self.sincos(ang, c+i, sn+i, tmp)
                b = F32 + (T*2+p)*10
                E(f"v_cvt_pk_bf16_f32 v{b+2}, v{c}, v{c+1}")
                E(f"v_cvt_pk_bf16_f32 v{b+3}, v{c+2}, v{c+3}")
                E(f"v_cvt_pk_bf16_f32 v{b+4}, v{sn}, v{sn+1}")
                E(f"v_cvt_pk_bf16_f32 v{b+5}, v{sn+2}, v{sn+3}")
                E(f"v_cvt_pk_bf16_f32 v{b+0}, -v{sn}, -v{sn+1}")
                E(f"v_cvt_pk_bf16_f32 v{b+1}, -v{sn+2}, -v{sn+3}")
                E(f"v_mov_b64 {v(b+6,2)}, {v(b+2,2)}")
                E(f"v_mov_b64 {v(b+8,2)}, {v(b+0,2)}")
    def const_twa(self):
        E = self.E; st = 210; ang = 208; tmp = 209
        E(f"v_cvt_f32_u32 v{st}, v{vN}")
        E(f"v_mul_f32 v{st}, {lit(1/512)}, v{st}")
        for p in range(2):
            E(f"v_lshlrev_b32 v{ang}, 3, v{vQ}")
            if p: E(f"v_add_u32 v{ang}, 1, v{ang}")
            E(f"v_cvt_f32_u32 v{ang}, v{ang}")
            E(f"v_mul_f32 v{ang}, v{ang}, v{st}")
            for i in range(4):
                if i: E(f"v_fma_f32 v{ang}, v{st}, 2.0, v{ang}")
                self.sincos(ang, TWA+4*p+i, TWA+8+4*p+i, tmp)
    def const_f16(self, dst, interleaved):
        E = self.E; c = 200; sn = 204; ang = 208; tmp = 209; st = 210
        E(f"v_cvt_f32_u32 v{st}, v{vN}")
        E(f"v_mul_f32 v{st}, {lit(1/16)}, v{st}")
        E(f"v_lshlrev_b32 v{ang}, 2, v{vQ}")
        E(f"v_cvt_f32_u32 v{ang}, v{ang}")
        E(f"v_mul_f32 v{ang}, v{ang}, v{st}")
        for i in range(4):
            if i: E(f"v_add_f32 v{ang}, v{ang}, v{st}")
            self.sincos(ang, c+i, sn+i, tmp)
        if not interleaved:
            E(f"v_cvt_pk_bf16_f32 v{dst+2}, v{c}, v{c+1}")
            E(f"v_cvt_pk_bf16_f32 v{dst+3}, v{c+2}, v{c+3}")
            E(f"v_cvt_pk_bf16_f32 v{dst+4}, v{sn}, v{sn+1}")
            E(f"v_cvt_pk_bf16_f32 v{dst+5}, v{sn+2}, v{sn+3}")
            E(f"v_cvt_pk_bf16_f32 v{dst+0}, -v{sn}, -v{sn+1}")
            E(f"v_cvt_pk_bf16_f32 v{dst+1}, -v{sn+2}, -v{sn+3}")
        else:
            for i in range(4):
                E(f"v_cvt_pk_bf16_f32 v{dst+i}, v{c+i}, -v{sn+i}")
                E(f"v_cvt_pk_bf16_f32 v{dst+4+i}, v{sn+i}, v{c+i}")
    def const_f64(self, dst):
        E = self.E; c = 240; sn = 241; ang = 242; tmp = 243; st = 244; a0 = 245
        E(f"s_lshl_b32 s{t0}, s{sW}, 4")
        E(f"v_add_u32 v{st}, s{t0}, v{vN}")
        E(f"v_cvt_f32_u32 v{st}, v{st}")
        E(f"v_mul_f32 v{st}, {lit(1/64)}, v{st}")
        E(f"v_lshlrev_b32 v{a0}, 2, v{vQ}")
        E(f"v_cvt_f32_u32 v{a0}, v{a0}")
        for j in range(4):
            if j: E(f"v_add_f32 v{a0}, {lit(16.0)}, v{a0}")
            E(f"v_mul_f32 v{ang}, v{a0}, v{st}")
            for i in range(4):
                if i: E(f"v_add_f32 v{ang}, v{ang}, v{st}")
                self.sincos(ang, c, sn, tmp)
                b = dst + 16*j + i
                E(f"v_cvt_pk_bf16_f32 v{b+0}, v{c}, v{sn}")
                E(f"v_cvt_pk_bf16_f32 v{b+4}, -v{sn}, v{c}")
                E(f"v_cvt_pk_bf16_f32 v{b+8}, v{c}, -v{sn}")
                E(f"v_cvt_pk_bf16_f32 v{b+12}, v{sn}, v{c}")
    def const_twb(self, fw, iv):
        E = self.E; ang = 242; tmp = 243; st = 244; a0 = 245
        E(f"s_lshl_b32 s{t0}, s{sW}, 4")
        E(f"v_add_u32 v{st}, s{t0}, v{vN}")
        E(f"v_cvt_f32_u32 v{st}, v{st}")
        E(f"v_mul_f32 v{st}, {lit(1/2048)}, v{st}")
        E(f"v_lshlrev_b32 v{a0}, 3, v{vQ}")
        E(f"v_cvt_f32_u32 v{a0}, v{a0}")
        E(f"v_mul_f32 v{ang}, v{a0}, v{st}")
        for i in range(4):
            for p in range(2):
                if i or p: E(f"v_add_f32 v{ang}, v{ang}, v{st}")
                self.sincos(ang, fw+8*p+i, fw+8*p+4+i, tmp)
        for r in range(0, 16, 2):
            E(f"v_pk_mul_f32 {v(fw+r,2)}, {v(fw+r,2)}, s[{t4}:{t4+1}]")
        E(f"v_lshlrev_b32 v{a0}, 2, v{vQ}")
        E(f"v_add_u32 v{a0}, s{t0}, v{a0}")
        E(f"v_cvt_f32_u32 v{a0}, v{a0}")
        E(f"v_mul_f32 v{a0}, {lit(1/2048)}, v{a0}")
        E(f"v_lshlrev_b32 v{st}, 1, v{vN}")
        E(f"v_cvt_f32_u32 v{st}, v{st}")
        for i in range(4):
            if i: E(f"v_add_f32 v{a0}, {lit(1/2048)}, v{a0}")
            E(f"v_mul_f32 v{ang}, v{a0}, v{st}")
            self.sincos(ang, iv+i, iv+4+i, tmp)
            E(f"v_add_f32 v{ang}, v{ang}, v{a0}")
            self.sincos(ang, iv+8+i, iv+12+i, tmp)
        for r in range(0, 16, 2):
            E(f"v_pk_mul_f32 {v(iv+r,2)}, {v(iv+r,2)}, s[{t2}:{t2+1}]")
    def w1_dma(self, units):
        E = self.E
        E("s_bfm_b64 exec, 56, 0")
        for u in units:
            gl, e2 = u >> 1, u & 1
            n, q = gl >> 2, gl & 3
            E(f"s_add_u32 m0, s80, {u*896}")
            E(f"s_add_u32 s{t0}, s81, {(32*n+16*e2+4*q)*3584}")
            E(f"buffer_load_dwordx4 v{vA4}, {s(SW1,4)}, s{t0} offen lds", tag="w1")
        E("s_mov_b64 exec, -1")
    def w2_dma(self, b):
        E = self.E
        for x in range(8):
            E(f"s_add_u32 m0, s100, {x*1024}")
            E(f"s_add_u32 s{t0}, s101, {(64*b+8*x)*1024}")
            E(f"buffer_load_dwordx4 v{vA5}, {s(SW2,4)}, s{t0} offen lds", tag=f"w2_{b}")
    def w2_read(self, b, addr):
        E = self.E
        E.wait(vm=f"w2_{b}")
        for ksl in range(4):
            for V in range(2):
                for e2 in range(2):
                    d = ((4*b+ksl)*2+V)*4 + 2*e2
                    E(f"ds_read_b64_tr_b16 {a(d,2)}, v{addr} offset:{ksl*2048+e2*1024+V*256}", tag="w2r")
        E.wait(lg="w2r")
    def build(self):
        E = self.E; o = self.o
        E("s_cmp_ge_u32 s2, 256")
        E("s_cbranch_scc1 L_end")
        E(f"s_load_dwordx16 s[{KA}:{KA+15}], s[0:1], 0")
        E(f"s_load_dwordx4 s[{KA+16}:{KA+19}], s[0:1], 64")
        E(f"s_load_dwordx2 s[{KA+20}:{KA+21}], s[0:1], 80")
        if self.prof:
            E(f"s_memrealtime s[{sSTAMP}:{sSTAMP+1}]")
        E(f"v_lshrrev_b32 v{vT0}, 6, v0")
        E(f"v_and_b32 v{vL}, 63, v0")
        E(f"v_readfirstlane_b32 s{sW}, v{vT0}")
        E(f"v_and_b32 v{vN}, 15, v0")
        E(f"v_lshrrev_b32 v{vQ}, 4, v{vL}")
        E(f"s_and_b32 s{sJ}, s2, 7"); E(f"s_lshr_b32 s{sT}, s2, 3")
        E(f"s_lshl_b32 s{sP}, s{sJ}, 5"); E(f"s_add_u32 s{sP}, s{sP}, s{sT}")
        E(f"s_lshr_b32 s{sG}, s{sP}, 4"); E(f"s_and_b32 s{sMU}, s{sP}, 15")
        E(f"s_mov_b32 s{sTO}, 200000")
        E(f"s_mov_b32 s{sMASK}, 0xffff0000"); E(f"s_mov_b32 s{sONES}, 0x3f803f80")
        E(f"s_mov_b32 s{t7}, {lit(1/512)}")
        E(f"v_lshlrev_b32 v{vL16}, 4, v{vL}")
        E(f"v_and_b32 v{vT0}, 31, v{vL}"); E(f"v_lshrrev_b32 v{vT1}, 5, v{vL}")
        E(f"v_lshlrev_b32 v{vGA}, 13, v{vT0}"); E(f"v_lshl_add_u32 v{vGA}, v{vT1}, 4, v{vGA}")
        E(f"v_lshlrev_b32 v{vA0}, 8, v{vQ}"); E(f"v_lshl_add_u32 v{vA0}, v{vN}, 2, v{vA0}")
        E(f"s_lshl_b32 s{t0}, s{sG}, 7"); E(f"s_lshl_b32 s{t1}, s{sW}, 5"); E(f"s_add_u32 s{t0}, s{t0}, s{t1}")
        E(f"s_lshl_b32 s{t1}, s{sMU}, 1"); E(f"s_add_u32 s{t0}, s{t0}, s{t1}"); E(f"s_lshl_b32 s{t6}, s{t0}, 10")
        F16A = 80
        self.const_f16(F16A, False)
        self.const_twa()
        E("s_waitcnt lgkmcnt(0)")
        if self.prof:
            E(f"s_mov_b32 s84, s{sSTAMP}"); self.names.append("start"); self.nstamp = 1
        self.stamp("karg")
        self.srd(SX, KA+0, 2097152)
        XR = 86
        for r in range(2):
            for i in range(4):
                E(f"buffer_load_dword v{XR+4*r+i}, v{vA0}, {s(SX,4)}, s{t6} offen offset:{1024*r+64*i}", tag="x")
        self.srd(SWS, KA+20, WS_SIZE)
        CL = 96
        for r in range(4): E(f"v_mov_b32 v{CL+r}, -1")
        E(f"v_lshlrev_b32 v{vA1}, 4, v0")
        E(f"s_lshl_b32 s{t0}, s{sP}, 13")
        E(f"buffer_store_dwordx4 {v(CL,4)}, v{vA1}, {s(SWS,4)}, s{t0} offen sc1", tag="clr")
        E(f"s_add_u32 s{t1}, s{t0}, 4096")
        E(f"buffer_store_dwordx4 {v(CL,4)}, v{vA1}, {s(SWS,4)}, s{t1} offen sc1", tag="clr")
        E(f"v_bfe_u32 v{vT0}, v{vL}, 4, 1"); E(f"v_lshlrev_b32 v{vA2}, 9, v{vT0}")
        E(f"v_lshl_add_u32 v{vA2}, v{vN}, 5, v{vA2}")
        E(f"v_lshrrev_b32 v{vT0}, 5, v{vL}"); E(f"v_lshl_add_u32 v{vA2}, v{vT0}, 4, v{vA2}")
        E(f"s_lshl_b32 s{t1}, s{sW}, 11"); E(f"s_add_u32 s{t1}, s{t1}, s{t0}"); E(f"s_add_u32 s{t1}, s{t1}, {X2}")
        E(f"buffer_store_dwordx4 {v(CL,4)}, v{vA2}, {s(SWS,4)}, s{t1} offen sc1", tag="clr")
        E(f"buffer_store_dwordx4 {v(CL,4)}, v{vA2}, {s(SWS,4)}, s{t1} offen offset:1024 sc1", tag="clr")
        E(f"v_lshrrev_b32 v{vT0}, 3, v0"); E(f"v_lshlrev_b32 v{vA3}, 13, v{vT0}")
        E(f"v_and_b32 v{vT0}, 7, v0"); E(f"v_lshl_add_u32 v{vA3}, v{vT0}, 4, v{vA3}")
        def wt_soff(d, tmp):
            E(f"s_lshr_b32 s{d}, s{sP}, 2"); E(f"s_lshl_b32 s{d}, s{d}, 7")
            E(f"s_and_b32 s{tmp}, s{sP}, 3"); E(f"s_lshl_b32 s{tmp}, s{tmp}, 19")
            E(f"s_add_u32 s{d}, s{d}, s{tmp}"); E(f"s_add_u32 s{d}, s{d}, {WT}")
        wt_soff(t1, t2)
        E(f"buffer_store_dwordx4 {v(CL,4)}, v{vA3}, {s(SWS,4)}, s{t1} offen sc1", tag="clr")
        E(f"s_add_u32 s{t1}, s{t1}, {32*8192}")
        E(f"buffer_store_dwordx4 {v(CL,4)}, v{vA3}, {s(SWS,4)}, s{t1} offen sc1", tag="clr")
        EPV = 100
        E(f"v_mov_b32 v{vT0}, {hex(EP)}")
        E(f"buffer_load_dword v{EPV}, v{vT0}, {s(SWS,4)}, 0 offen sc1", tag="clr")
        self.srd(SWR, KA+2, 2048*514); self.srd(SWI, KA+4, 2048*514)
        E(f"s_lshr_b32 s{t0}, s{sP}, 6"); E(f"s_lshl_b32 s{t0}, s{t0}, 4")
        E(f"s_bfe_u32 s{t1}, s{sP}, 0x10002"); E(f"s_lshl_b32 s{t1}, s{t1}, 3"); E(f"s_add_u32 s{t0}, s{t0}, s{t1}")
        E(f"s_bfe_u32 s{t1}, s{sP}, 0x20003"); E(f"s_lshl_b32 s{t1}, s{t1}, 9"); E(f"s_add_u32 s{t0}, s{t0}, s{t1}")
        E(f"s_bfe_u32 s{t1}, s{sP}, 0x10005"); E(f"s_lshl_b32 s{t1}, s{t1}, 8"); E(f"s_add_u32 s{t0}, s{t0}, s{t1}")
        E(f"s_lshl_b32 s{t1}, s{sW}, 1"); E(f"s_add_u32 s{t0}, s{t0}, s{t1}")
        E(f"s_mul_i32 s{t0}, s{t0}, 514")
        E(f"s_and_b32 s{t1}, s{sP}, 3"); E(f"s_lshl_b32 s{t1}, s{t1}, 7"); E(f"s_add_u32 s{t0}, s{t0}, s{t1}")
        E(f"s_add_u32 s{t0}, s{t0}, 2")
        E(f"v_lshlrev_b32 v{vT1}, 1, v{vL}")
        WRW = 150
        for jj in range(4):
            for dn in range(2):
                E(f"buffer_load_ushort v{WRW+4*dn+jj}, v{vT1}, {s(SWR,4)}, s{t0} offen offset:{514*dn}", tag="W")
                E(f"buffer_load_ushort v{WRW+8+4*dn+jj}, v{vT1}, {s(SWI,4)}, s{t0} offen offset:{514*dn}", tag="W")
            if jj < 3: E(f"s_add_u32 s{t0}, s{t0}, {64*514}")
        E(f"v_lshlrev_b32 v{vT2}, 6, v{vN}"); E(f"v_lshl_add_u32 v{vT2}, v{vQ}, 3, v{vT2}")
        for r in range(2):
            for T in range(2):
                E(f"buffer_load_dwordx2 {v(XC+4*r+2*T,2)}, v{vT2}, {s(SX,4)}, s{t6} offen offset:{1024*r+32*T}", tag="W")
        self.srd(SW1, KA+8, 512*1792*2); self.srd(SW2, KA+12, 1792*512*2); self.srd(SOUT, KA+16, 2097152)
        self.srd(SB1, KA+10, 1792*2); self.srd(SB2, KA+14, 512*2)
        E(f"v_bfe_u32 v{vT0}, v{vL}, 2, 2"); E(f"v_mul_u32_u24 v{vA4}, 3584, v{vT0}")
        E(f"v_lshl_add_u32 v{vA4}, v{vQ}, 6, v{vA4}")
        E(f"v_and_b32 v{vT0}, 3, v{vL}"); E(f"v_lshl_add_u32 v{vA4}, v{vT0}, 4, v{vA4}")
        E(f"v_bfe_u32 v{vT0}, v{vL}, 1, 2"); E(f"v_mul_u32_u24 v{vT0}, 3584, v{vT0}")
        E(f"v_and_b32 v{vT3}, 1, v{vL}"); E(f"v_lshl_add_u32 v{vT0}, v{vT3}, 4, v{vT0}")
        E(f"v_add_u32 v{vT0}, 192, v{vT0}")
        E(f"v_cmp_le_u32 vcc, 48, v{vL}")
        E(f"v_cndmask_b32 v{vA4}, v{vA4}, v{vT0}, vcc")
        E(f"s_mul_i32 s80, s{sW}, {32*896}")
        E(f"s_mul_i32 s81, s{sW}, {128*3584}"); E(f"s_mul_i32 s{t0}, s{sMU}, 224"); E(f"s_add_u32 s81, s81, s{t0}")
        E(f"v_lshrrev_b32 v{vT0}, 5, v{vL}"); E(f"v_lshlrev_b32 v{vA5}, 12, v{vT0}")
        E(f"v_bfe_u32 v{vT0}, v{vL}, 2, 2"); E(f"v_lshl_add_u32 v{vA5}, v{vT0}, 10, v{vA5}")
        E(f"v_bfe_u32 v{vT0}, v{vL}, 4, 1"); E(f"v_lshl_add_u32 v{vA5}, v{vT0}, 6, v{vA5}")
        E(f"v_and_b32 v{vT0}, 3, v{vL}"); E(f"v_lshl_add_u32 v{vA5}, v{vT0}, 4, v{vA5}")
        E(f"s_lshl_b32 s100, s{sW}, 13"); E(f"s_add_u32 s100, s100, {L_ST}")
        E(f"s_mul_i32 s101, s{sW}, {448*1024}"); E(f"s_and_b32 s{t0}, s{sMU}, 7"); E(f"s_lshl_b32 s{t0}, s{t0}, 7")
        E(f"s_add_u32 s101, s101, s{t0}")
        self.const_f32()
        E.wait(vm="x")
        self.stamp("x")
        sa, qa, sb, qb = 110, 111, 112, 113
        for i in range(4):
            for (r, S_, Q_) in ((0, sa, qa), (1, sb, qb)):
                x = XR+4*r+i
                E(f"v_dot2_f32_bf16 v{S_}, v{x}, s{sONES}, {'0' if i == 0 else v(S_)}")
                E(f"v_dot2_f32_bf16 v{Q_}, v{x}, v{x}, {'0' if i == 0 else v(Q_)}")
        U = 130
        fill = []
        for r in range(2):
            for i in range(4):
                fill.append(f"v_lshlrev_b32 v{U+8*r+i}, 16, v{XR+4*r+i}")
                fill.append(f"v_and_b32 v{U+8*r+4+i}, s{sMASK}, v{XR+4*r+i}")
        RR = 114
        self.ln_reduce(sa, qa, sb, qb, RR, fill)
        E.wait(vm="clr")
        E("s_barrier")
        E(f"v_readfirstlane_b32 s{sTOK}, v{EPV}")
        for r in range(2):
            for h in range(0, 8, 2):
                E(f"v_pk_fma_f32 {v(U+8*r+h,2)}, {v(U+8*r+h,2)}, {v(RR+2*r,2)}, {v(RR+2*r,2)} op_sel:[0,0,1] op_sel_hi:[1,0,1]")
        E(f"s_add_u32 s{t5}, s{sTOK}, 1")
        E(f"s_add_u32 s{sTOK}, s{sTOK}, 0x5bd1e995")
        OP = 122
        for p in range(2):
            for r in range(2):
                for h in range(2):
                    E(f"v_cvt_pk_bf16_f32 v{OP+4*p+2*r+h}, v{U+8*r+4*p+2*h}, v{U+8*r+4*p+2*h+1}")
        AC = 170
        for p in range(2):
            self.mm16(AC+4*p, OP+4*p, F16A+2, True)
            self.mm16(AC+8+4*p, OP+4*p, F16A+0, True)
        E(f"s_lshl_b32 s{t0}, s{sP}, 6"); E(f"s_add_u32 s{t0}, s{t0}, {F1}")
        E(f"v_mov_b32 v{vT0}, {hex(OOB)}"); E(f"v_mov_b32 v{vT1}, s{t0}")
        E(f"v_cmp_eq_u32 vcc, 0, v0"); E(f"v_cndmask_b32 v{vT0}, v{vT0}, v{vT1}, vcc")
        E(f"v_mov_b32 v{vT1}, s{sTOK}")
        E(f"buffer_store_dword v{vT1}, v{vT0}, {s(SWS,4)}, 0 offen sc1", tag="f1s")
        TM = 186; Y = 130
        for p in range(2):
            for h in range(0, 4, 2):
                self.cmul_pk(Y+4*p+h, Y+8+4*p+h, AC+4*p+h, AC+8+4*p+h, TWA+4*p+h, TWA+8+4*p+h, TM, False)
        for p in range(2):
            for part in range(2):
                for h in range(2):
                    E(f"v_cvt_pk_bf16_f32 v{OP+4*p+2*part+h}, v{Y+8*part+4*p+2*h}, v{Y+8*part+4*p+2*h+1}")
        for p in range(2):
            for T in range(2):
                self.mm16(AC+4*T, self.f32w(T, p, "fr"), OP+4*p, p == 0)
                self.mm16(AC+8+4*T, self.f32w(T, p, "fi"), OP+4*p, p == 0)
        E(f"v_lshlrev_b32 v{vT2}, 9, v{vQ}"); E(f"v_lshl_add_u32 v{vT2}, v{vN}, 2, v{vT2}")
        E(f"s_lshl_b32 s{t0}, s{sW}, 11"); E(f"s_add_u32 s{t0}, s{t0}, {L_SA}"); E(f"v_add_u32 v{vT2}, s{t0}, v{vT2}")
        E(f"v_lshrrev_b32 v{vT0}, 1, v0"); E(f"v_add_u32 v{vT3}, 1, v{vT0}"); E(f"v_sub_u32 v{vT0}, 511, v{vT0}")
        E(f"v_and_b32 v{vT1}, 1, v0"); E(f"v_cmp_eq_u32 vcc, 1, v{vT1}")
        E(f"v_add_u32 v{Y}, 128, v{vT3}"); E(f"v_subrev_u32 v{Y+1}, 128, v{vT0}")
        E(f"v_cndmask_b32 v{vT3}, v{vT3}, v{vT0}, vcc"); E(f"v_cndmask_b32 v{vT0}, v{Y}, v{Y+1}, vcc")
        E(f"v_lshlrev_b32 v{vT3}, 2, v{vT3}"); E(f"v_lshlrev_b32 v{vT0}, 2, v{vT0}")
        E(f"v_add_u32 v{vT3}, {L_SA}, v{vT3}"); E(f"v_add_u32 v{vT0}, {L_SA}, v{vT0}")
        for T in range(2):
            for i in range(4):
                E(f"v_cvt_pk_bf16_f32 v{Y+4*T+i}, v{AC+4*T+i}, v{AC+8+4*T+i}")
                E(f"ds_write_b32 v{vT2}, v{Y+4*T+i} offset:{128*i+64*T}", tag="a")
        FP = 101
        E(f"s_lshl_b32 s{t0}, s{sW}, 12"); E(f"s_add_u32 s{t0}, s{t0}, {F1}")
        E(f"v_lshlrev_b32 v{vA0}, 6, v{vL}")
        f1load = f"buffer_load_dword v{FP}, v{vA0}, {s(SWS,4)}, s{t0} offen sc1"
        E(f"s_mov_b32 s{t3}, s{t0}")
        f1load = f1load.replace(f"s{t0} offen", f"s{t3} offen")
        E(f1load, tag="f1p")
        E.wait(lg="a")
        E("s_barrier")
        D = 138
        for h, ad in ((0, vT3), (1, vT0)):
            E(f"ds_read2st64_b32 {v(D+4*h,2)}, v{ad} offset0:0 offset1:8", tag=f"a{h}")
            E(f"ds_read2st64_b32 {v(D+4*h+2,2)}, v{ad} offset0:16 offset1:24", tag=f"a{h}")
        E(f"s_lshl_b32 s{t0}, s{sP}, 13"); E(f"s_add_u32 s{t1}, s{t0}, 4096")
        E.wait(lg="a0")
        E(f"buffer_store_dwordx4 {v(D,4)}, v{vA1}, {s(SWS,4)}, s{t0} offen sc1", tag="x1s")
        E.wait(lg="a1")
        E(f"buffer_store_dwordx4 {v(D+4,4)}, v{vA1}, {s(SWS,4)}, s{t1} offen sc1", tag="x1s")
        self.stamp("A_st")
        E.wait(vm="W")
        for r in range(8):
            E(f"v_lshl_or_b32 v{WRW+r}, v{WRW+8+r}, 16, v{WRW+r}")
        E(f"s_lshl_b32 s{t0}, s{sW}, 1"); E(f"v_and_b32 v{vT0}, 7, v{vL}"); E(f"v_xor_b32 v{vT0}, s{t0}, v{vT0}")
        E(f"v_lshlrev_b32 v{vT0}, 4, v{vT0}"); E(f"v_lshl_add_u32 v{vT0}, v{vL}, 7, v{vT0}"); E(f"v_add_u32 v{vT0}, {L_SB}, v{vT0}")
        E(f"v_xor_b32 v{vT1}, 16, v{vT0}")
        E(f"ds_write_b128 v{vT0}, {v(WRW,4)}", tag="w"); E(f"ds_write_b128 v{vT1}, {v(WRW+4,4)}", tag="w")
        E(f"v_lshrrev_b32 v{vT2}, 3, v0"); E(f"v_xor_b32 v{vT3}, v{vT2}, v0"); E(f"v_and_b32 v{vT3}, 7, v{vT3}")
        E(f"v_lshlrev_b32 v{vT3}, 4, v{vT3}"); E(f"v_lshl_add_u32 v{vT3}, v{vT2}, 7, v{vT3}"); E(f"v_add_u32 v{vT3}, {L_SB}, v{vT3}")
        self.checked([f1load], [FP], "f1p", ref=sTOK)
        E.wait(lg="w")
        E("s_barrier")
        E(f"ds_read_b128 {v(WRW+8,4)}, v{vT3}", tag="w0"); E(f"ds_read_b128 {v(WRW+12,4)}, v{vT3} offset:4096", tag="w1r")
        wt_soff(t1, t2)
        E(f"s_add_u32 s{t2}, s{t1}, {32*8192}")
        E.wait(lg="w0")
        E(f"buffer_store_dwordx4 {v(WRW+8,4)}, v{vA3}, {s(SWS,4)}, s{t1} offen sc1", tag="wts")
        E.wait(lg="w1r")
        E(f"buffer_store_dwordx4 {v(WRW+12,4)}, v{vA3}, {s(SWS,4)}, s{t2} offen sc1", tag="wts")
        E(f"v_mov_b32 v{vT0}, {hex(OOB)}"); E(f"v_mov_b32 v{vT1}, {hex(EP)}")
        E(f"s_cmp_eq_u32 s2, 0"); E(f"s_cselect_b32 s{t0}, 0, 1")
        E(f"v_cmp_eq_u32 vcc, s{t0}, v0"); E(f"s_cselect_b64 vcc, vcc, 0")
        E(f"v_cndmask_b32 v{vT0}, v{vT0}, v{vT1}, vcc"); E(f"v_mov_b32 v{vT1}, s{t5}")
        E(f"buffer_store_dword v{vT1}, v{vT0}, {s(SWS,4)}, 0 offen", tag="eps")
        E(f"v_lshrrev_b32 v{vT0}, 3, v0"); E(f"v_lshlrev_b32 v{vA3}, 9, v{vT0}")
        E(f"v_and_b32 v{vT0}, 7, v0"); E(f"v_lshl_add_u32 v{vA3}, v{vT0}, 4, v{vA3}")
        def ln2_soff(d, tmp):
            E(f"s_lshl_b32 s{d}, s{sG}, 17"); E(f"s_lshr_b32 s{tmp}, s{sMU}, 2"); E(f"s_lshl_b32 s{tmp}, s{tmp}, 15")
            E(f"s_add_u32 s{d}, s{d}, s{tmp}"); E(f"s_and_b32 s{tmp}, s{sMU}, 3"); E(f"s_lshl_b32 s{tmp}, s{tmp}, 7")
            E(f"s_add_u32 s{d}, s{d}, s{tmp}"); E(f"s_add_u32 s{d}, s{d}, {LN2}")
        ln2_soff(t1, t2)
        E(f"s_add_u32 s{t2}, s{t1}, 16384")
        E(f"buffer_store_dwordx4 {v(CL,4)}, v{vA3}, {s(SWS,4)}, s{t1} offen sc1", tag="clr2")
        E(f"buffer_store_dwordx4 {v(CL,4)}, v{vA3}, {s(SWS,4)}, s{t2} offen sc1", tag="clr2")
        if self.stop == "A":
            return self.finish()
        self.w1_dma(range(0, 32))
        F64, TF, TI, WF, DZ, A1, A2 = 80, 144, 160, 176, 192, 224, 240
        E(f"s_mov_b32 s{t4}, {lit(2.0**-11)}"); E(f"s_mov_b32 s{t5}, {lit(2.0**-11)}")
        E(f"s_mov_b32 s{t2}, {lit(2.0**-10)}"); E(f"s_mov_b32 s{t3}, {lit(2.0**-10)}")
        self.const_f64(F64)
        self.const_twb(TF, TI)
        E(f"s_lshl_b32 s{t0}, s{sW}, 19"); E(f"s_lshl_b32 s{t1}, s{sP}, 5"); E(f"s_add_u32 s{t0}, s{t0}, s{t1}")
        E(f"s_add_u32 s{t1}, s{t0}, {32*8192}")
        E(f"s_lshl_b32 s{t2}, s{sP}, 13"); E(f"s_lshl_b32 s{t3}, s{sW}, 11"); E(f"s_add_u32 s{t2}, s{t2}, s{t3}")
        E(f"s_add_u32 s{t2}, s{t2}, {WT}")
        RW = A2
        E.wait(vm="x1s")
        lds = [f"buffer_load_dwordx4 {v(DZ,4)}, v{vGA}, {s(SWS,4)}, s{t0} offen sc1",
               f"buffer_load_dwordx4 {v(DZ+4,4)}, v{vGA}, {s(SWS,4)}, s{t1} offen sc1",
               f"buffer_load_dwordx4 {v(RW,4)}, v{vL16}, {s(SWS,4)}, s{t2} offen sc1",
               f"buffer_load_dwordx4 {v(RW+4,4)}, v{vL16}, {s(SWS,4)}, s{t2} offen offset:1024 sc1"]
        for l in lds: E(l, tag="x1p")
        E(f"v_lshrrev_b32 v{vT0}, 5, v{vL}"); E(f"v_lshlrev_b32 v{vT0}, 12, v{vT0}")
        E(f"v_and_b32 v{vT1}, 31, v{vL}"); E(f"v_lshl_add_u32 v{vT0}, v{vT1}, 4, v{vT0}")
        E(f"s_lshl_b32 s{t3}, s{sW}, 10"); E(f"s_add_u32 s{t4}, s{t3}, {L_SA}"); E(f"v_add_u32 v{vA0}, s{t4}, v{vT0}")
        E(f"v_add_u32 v{vA1}, {L_SA}, v{vL16}")
        E(f"v_add_u32 v{vT3}, {L_SB}, v{vL16}"); E(f"v_add_u32 v{vT2}, s{t3}, v{vT3}")
        self.checked(lds, list(range(DZ, DZ+8)) + list(range(RW, RW+8)), "x1p")
        self.stamp("X1")
        E(f"ds_write_b128 v{vA0}, {v(DZ,4)}", tag="b"); E(f"ds_write_b128 v{vA0}, {v(DZ+4,4)} offset:512", tag="b")
        for T in range(2):
            for i in range(4):
                E(f"v_lshlrev_b32 v{WF+4*T+i}, 16, v{RW+2*i+T}")
                E(f"v_and_b32 v{WF+8+4*T+i}, s{sMASK}, v{RW+2*i+T}")
        E.wait(lg="b")
        E("s_barrier")
        for j in range(4):
            for wh in range(2):
                E(f"ds_read_b128 {v(DZ+16*wh+4*j,4)}, v{vA1} offset:{4096*wh+1024*j}", tag=f"b{j}")
        for j in range(4):
            E.wait(lg=f"b{j}")
            self.mm16(A1+0, DZ+4*j, F64+16*j+0, j == 0)
            self.mm16(A1+4, DZ+4*j, F64+16*j+4, j == 0)
            self.mm16(A1+8, DZ+16+4*j, F64+16*j+8, j == 0)
            self.mm16(A1+12, DZ+16+4*j, F64+16*j+12, j == 0)
        Er, Ei, Or, Oi, TM = DZ, DZ+4, DZ+8, DZ+12, DZ+16
        ng = " neg_lo:[0,1] neg_hi:[0,1]"
        for h in (0, 2):
            E(f"v_pk_add_f32 {v(Er+h,2)}, {v(A1+h,2)}, {v(A1+8+h,2)}")
            E(f"v_pk_add_f32 {v(Ei+h,2)}, {v(A1+4+h,2)}, {v(A1+12+h,2)}" + ng)
            E(f"v_pk_add_f32 {v(Or+h,2)}, {v(A1+4+h,2)}, {v(A1+12+h,2)}")
            E(f"v_pk_add_f32 {v(Oi+h,2)}, {v(A1+8+h,2)}, {v(A1+h,2)}" + ng)
        for h in (0, 2):
            self.cmul_pk(A1+h, A1+4+h, Er+h, Ei+h, TF+h, TF+4+h, TM, False)
            self.cmul_pk(A1+8+h, A1+12+h, Or+h, Oi+h, TF+8+h, TF+12+h, TM+4, False)
        OP = DZ+24
        for r in range(8):
            E(f"v_cvt_pk_bf16_f32 v{OP+r}, v{A1+2*r}, v{A1+2*r+1}")
        for p in range(2):
            for T in range(2):
                self.mm16(A2+8*T, self.f32w(T, p, "fr"), OP+4*p, p == 0)
                self.mm16(A2+8*T+4, self.f32w(T, p, "fi"), OP+4*p, p == 0)
        for T in range(2):
            for h in (0, 2):
                self.cmul_pk(A1+8*T+h, A1+8*T+4+h, A2+8*T+h, A2+8*T+4+h, WF+4*T+h, WF+8+4*T+h, TM+4*T, True)
        for r in range(8):
            E(f"v_cvt_pk_bf16_f32 v{OP+r}, v{A1+2*r}, v{A1+2*r+1}")
        for T in range(2):
            for Uu in range(2):
                self.mm16(A2+8*Uu, OP+4*T, self.f32w(Uu, T, "ir"), T == 0)
                self.mm16(A2+8*Uu+4, OP+4*T, self.f32w(Uu, T, "ii"), T == 0)
        for Uu in range(2):
            for h in (0, 2):
                self.cmul_pk(A1+8*Uu+h, A1+8*Uu+4+h, A2+8*Uu+h, A2+8*Uu+4+h, TI+8*Uu+h, TI+8*Uu+4+h, TM+4*Uu, True)
        Pr, Pi, Qr, Qi = DZ, DZ+4, DZ+8, DZ+12
        for h in (0, 2):
            E(f"v_pk_add_f32 {v(Pr+h,2)}, {v(A1+h,2)}, {v(A1+12+h,2)}" + ng)
            E(f"v_pk_add_f32 {v(Pi+h,2)}, {v(A1+4+h,2)}, {v(A1+8+h,2)}")
            E(f"v_pk_add_f32 {v(Qr+h,2)}, {v(A1+h,2)}, {v(A1+12+h,2)}")
            E(f"v_pk_add_f32 {v(Qi+h,2)}, {v(A1+8+h,2)}, {v(A1+4+h,2)}" + ng)
        for i in range(4):
            E(f"v_cvt_pk_bf16_f32 v{OP+i}, v{Pr+i}, v{Pi+i}")
        E(f"ds_write_b128 v{vT2}, {v(OP,4)}", tag="b")
        for i in range(4):
            E(f"v_cvt_pk_bf16_f32 v{OP+4+i}, v{Qr+i}, v{Qi+i}")
        E(f"ds_write_b128 v{vT2}, {v(OP+4,4)} offset:4096", tag="b")
        E.wait(lg="b")
        E("s_barrier")
        for j in range(4):
            for wh in range(2):
                E(f"ds_read_b128 {v(DZ+16*wh+4*j,4)}, v{vT3} offset:{4096*wh+1024*j}", tag=f"b{j}")
        for j in range(4):
            E.wait(lg=f"b{j}")
            self.mm16(A1+0, F64+16*j+8, DZ+4*j, j == 0)
            self.mm16(A1+4, F64+16*j+12, DZ+4*j, j == 0)
            self.mm16(A1+8, F64+16*j+0, DZ+16+4*j, j == 0)
            self.mm16(A1+12, F64+16*j+4, DZ+16+4*j, j == 0)
        E(f"s_lshl_b32 s{t0}, s{sP}, 13"); E(f"s_lshl_b32 s{t1}, s{sW}, 11"); E(f"s_add_u32 s{t0}, s{t0}, s{t1}")
        E(f"s_add_u32 s{t0}, s{t0}, {X2}")
        E("s_nop 7")
        ls = E.newlabel("L_nonyq")
        E(f"s_cmp_lg_u32 s{sP}, 255"); E(f"s_cbranch_scc1 {ls}")
        for r in range(8):
            E(f"v_add_f32 v{A1+r}, v{A1+r}, v{A1+8+r}"); E(f"v_mul_f32 v{A1+r}, 0.5, v{A1+r}"); E(f"v_mov_b32 v{A1+8+r}, 0")
        E.label(ls)
        for i in range(4):
            E(f"v_cvt_pk_bf16_f32 v{DZ+i}, v{A1+i}, v{A1+4+i}")
            E(f"v_cvt_pk_bf16_f32 v{DZ+4+i}, v{A1+8+i}, v{A1+12+i}")
        for i in range(4):
            E(f"v_permlane32_swap_b32 v{DZ+i}, v{DZ+4+i}")
        E.wait(vm="clr2")
        E(f"buffer_store_dwordx4 {v(DZ,4)}, v{vA2}, {s(SWS,4)}, s{t0} offen sc1", tag="x2s")
        E(f"buffer_store_dwordx4 {v(DZ+4,4)}, v{vA2}, {s(SWS,4)}, s{t0} offen offset:1024 sc1", tag="x2s")
        self.stamp("B_st")
        if self.stop == "B":
            return self.finish()
        vW2 = vA5 + 0
        E(f"v_lshrrev_b32 v{vT0}, 5, v{vL}"); E(f"v_lshlrev_b32 v{vA2}, 9, v{vT0}")
        E(f"v_bfe_u32 v{vT0}, v{vL}, 2, 2"); E(f"v_lshl_add_u32 v{vA2}, v{vT0}, 6, v{vA2}")
        E(f"v_bfe_u32 v{vT0}, v{vL}, 4, 1"); E(f"v_lshl_add_u32 v{vA2}, v{vT0}, 5, v{vA2}")
        E(f"v_and_b32 v{vT0}, 3, v{vL}"); E(f"v_lshl_add_u32 v{vA2}, v{vT0}, 3, v{vA2}")
        E(f"v_add_u32 v{vA2}, s100, v{vA2}")
        for b in range(0, 4):
            self.w2_dma(b); self.w2_read(b, vA2)
        F16C, XF, DC, AC, Y, OP, TM = 80, 88, 104, 112, 128, 144, 152
        self.const_f16(F16C, True)
        for r in range(2):
            for T in range(2):
                for h in range(2):
                    E(f"v_lshlrev_b32 v{XF+8*r+4*T+2*h}, 16, v{XC+4*r+2*T+h}")
                    E(f"v_and_b32 v{XF+8*r+4*T+2*h+1}, s{sMASK}, v{XC+4*r+2*T+h}")
        for h, dst in ((0, vA0), (1, vA1)):
            E(f"s_lshl_b32 s{t0}, s{sW}, 5"); E(f"s_add_u32 s{t0}, s{t0}, {128*h}")
            E(f"v_and_b32 v{vT0}, 31, v{vL}"); E(f"v_add_u32 v{vT0}, s{t0}, v{vT0}")
            E(f"v_sub_u32 v{vT1}, 511, v{vT0}")
            E(f"v_cmp_eq_u32 vcc, 255, v{vT0}"); E(f"v_cndmask_b32 v{vT1}, v{vT1}, 0, vcc")
            E(f"v_add_u32 v{vT0}, 1, v{vT0}")
            E(f"v_cmp_le_u32 vcc, 32, v{vL}"); E(f"v_cndmask_b32 v{vT0}, v{vT0}, v{vT1}, vcc")
            E(f"v_and_b32 v{vT1}, 1, v{vT0}"); E(f"v_lshlrev_b32 v{dst}, 10, v{vT1}")
            E(f"v_lshrrev_b32 v{vT1}, 7, v{vT0}"); E(f"v_lshl_add_u32 v{dst}, v{vT1}, 8, v{dst}")
            E(f"v_bfe_u32 v{vT1}, v{vT0}, 1, 4"); E(f"v_lshl_add_u32 v{dst}, v{vT1}, 4, v{dst}")
            E(f"v_bfe_u32 v{vT1}, v{vT0}, 5, 2"); E(f"v_lshl_add_u32 v{dst}, v{vT1}, 2, v{dst}")
            E(f"v_add_u32 v{dst}, {L_SA}, v{dst}")
        E(f"s_lshl_b32 s{t0}, s{sW}, 11"); E(f"s_add_u32 s{t0}, s{t0}, {L_SA}"); E(f"v_add_u32 v{vT2}, s{t0}, v{vL16}")
        E(f"s_lshl_b32 s{t0}, s{sW}, 18"); E(f"s_lshl_b32 s{t1}, s{sG}, 9"); E(f"s_add_u32 s{t0}, s{t0}, s{t1}")
        E(f"s_lshl_b32 s{t1}, s{sMU}, 5"); E(f"s_add_u32 s{t0}, s{t0}, s{t1}"); E(f"s_add_u32 s{t0}, s{t0}, {X2}")
        E(f"s_add_u32 s{t1}, s{t0}, {128*8192}")
        E.wait(vm="x2s")
        lds = [f"buffer_load_dwordx4 {v(DC,4)}, v{vGA}, {s(SWS,4)}, s{t0} offen sc1",
               f"buffer_load_dwordx4 {v(DC+4,4)}, v{vGA}, {s(SWS,4)}, s{t1} offen sc1"]
        for l in lds: E(l, tag="x2p")
        self.checked(lds, list(range(DC, DC+8)), "x2p")
        self.stamp("X2")
        for h, ad in ((0, vA0), (1, vA1)):
            for rho in range(4):
                E(f"ds_write_b32 v{ad}, v{DC+4*h+rho} offset:{2048*rho}", tag="c")
        E.wait(lg="c")
        E("s_barrier")
        E(f"ds_read_b128 {v(DC,4)}, v{vT2}", tag="c0"); E(f"ds_read_b128 {v(DC+4,4)}, v{vT2} offset:1024", tag="c1")
        for p in range(2):
            E.wait(lg=f"c{p}")
            self.mm16(AC+4*p, DC+4*p, F16C, True)
            self.mm16(AC+8+4*p, DC+4*p, F16C+4, True)
        for p in range(2):
            for h in (0, 2):
                self.cmul_pk(Y+4*p+h, Y+8+4*p+h, AC+4*p+h, AC+8+4*p+h, TWA+4*p+h, TWA+8+4*p+h, TM, True)
        for p in range(2):
            for part in range(2):
                for h in range(2):
                    E(f"v_cvt_pk_bf16_f32 v{OP+4*p+2*part+h}, v{Y+8*part+4*p+2*h}, v{Y+8*part+4*p+2*h+1}")
        for p in range(2):
            for T in range(2):
                self.mm16(AC+4*T, OP+4*p, self.f32w(T, p, "ir"), p == 0)
                self.mm16(AC+8+4*T, OP+4*p, self.f32w(T, p, "ii"), p == 0)
        E(f"v_lshlrev_b32 v{vT0}, 2, v{vN}"); E(f"v_add_u32 v{vT0}, v{vT0}, v{vQ}"); E(f"v_lshlrev_b32 v{vT0}, 7, v{vT0}")
        E(f"s_lshl_b32 s{t0}, s{sW}, 1"); E(f"v_and_b32 v{vT1}, 7, v{vN}"); E(f"v_xor_b32 v{vT1}, s{t0}, v{vT1}")
        E(f"v_lshl_add_u32 v{vA0}, v{vT1}, 4, v{vT0}"); E(f"v_add_u32 v{vA0}, {L_SB}, v{vA0}"); E(f"v_xor_b32 v{vA1}, 16, v{vA0}")
        E(f"v_lshrrev_b32 v{vT0}, 5, v0"); E(f"v_xor_b32 v{vT0}, v{vT0}, v0"); E(f"v_and_b32 v{vT0}, 7, v{vT0}")
        E(f"v_lshrrev_b32 v{vT1}, 3, v0"); E(f"v_lshlrev_b32 v{vT1}, 7, v{vT1}"); E(f"v_lshl_add_u32 v{vT3}, v{vT0}, 4, v{vT1}")
        E(f"v_add_u32 v{vT3}, {L_SB}, v{vT3}")
        H = AC
        for r in range(0, 16, 2):
            E(f"v_pk_add_f32 {v(H+r,2)}, {v(H+r,2)}, {v(XF+r,2)}")
        sa, qa, sb, qb, RR = Y, Y+1, Y+2, Y+3, Y+12
        for r, (S_, Q_) in enumerate(((sa, qa), (sb, qb))):
            b = H+8*r; u = Y+4+4*r
            E(f"v_pk_add_f32 {v(u,2)}, {v(b,2)}, {v(b+2,2)}"); E(f"v_pk_mul_f32 {v(u+2,2)}, {v(b,2)}, {v(b,2)}")
            E(f"v_pk_add_f32 {v(u,2)}, {v(u,2)}, {v(b+4,2)}"); E(f"v_pk_fma_f32 {v(u+2,2)}, {v(b+2,2)}, {v(b+2,2)}, {v(u+2,2)}")
            E(f"v_pk_add_f32 {v(u,2)}, {v(u,2)}, {v(b+6,2)}"); E(f"v_pk_fma_f32 {v(u+2,2)}, {v(b+4,2)}, {v(b+4,2)}, {v(u+2,2)}")
            E(f"v_add_f32 v{S_}, v{u}, v{u+1}"); E(f"v_pk_fma_f32 {v(u+2,2)}, {v(b+6,2)}, {v(b+6,2)}, {v(u+2,2)}")
            E(f"v_add_f32 v{Q_}, v{u+2}, v{u+3}")
        HBF = DC
        fill = [f"v_cvt_pk_bf16_f32 v{HBF+r}, v{H+2*r}, v{H+2*r+1}" for r in range(8)]
        self.ln_reduce(sa, qa, sb, qb, RR, fill)
        for r in range(2):
            for h in range(0, 8, 2):
                E(f"v_pk_fma_f32 {v(H+8*r+h,2)}, {v(H+8*r+h,2)}, {v(RR+2*r,2)}, {v(RR+2*r,2)} op_sel:[0,0,1] op_sel_hi:[1,0,1]")
            for h in range(4):
                E(f"v_cvt_pk_bf16_f32 v{OP+4*r+h}, v{H+8*r+2*h}, v{H+8*r+2*h+1}")
            E(f"ds_write_b128 v{vA0 if r == 0 else vA1}, {v(OP+4*r,4)}", tag="c")
        E.wait(lg="c")
        E("s_barrier")
        E(f"ds_read_b128 {v(Y,4)}, v{vT3}", tag="c0"); E(f"ds_read_b128 {v(Y+4,4)}, v{vT3} offset:4096", tag="c1")
        ln2_soff(t1, t2)
        E(f"s_add_u32 s{t2}, s{t1}, 16384")
        for r in range(2):
            E(f"v_permlane16_swap_b32 v{HBF+4*r}, v{HBF+4*r+2}"); E(f"v_permlane16_swap_b32 v{HBF+4*r+1}, v{HBF+4*r+3}")
        E.wait(lg="c0")
        E(f"buffer_store_dwordx4 {v(Y,4)}, v{vA3}, {s(SWS,4)}, s{t1} offen sc1", tag="lns")
        E.wait(lg="c1")
        E(f"buffer_store_dwordx4 {v(Y+4,4)}, v{vA3}, {s(SWS,4)}, s{t2} offen sc1", tag="lns")
        E(f"v_lshlrev_b32 v{vT0}, 6, v{vN}"); E(f"v_and_b32 v{vT1}, 1, v{vQ}"); E(f"v_lshl_add_u32 v{vT0}, v{vT1}, 5, v{vT0}")
        E(f"v_lshrrev_b32 v{vT1}, 1, v{vQ}"); E(f"v_lshl_add_u32 v{vT0}, v{vT1}, 4, v{vT0}")
        E(f"s_add_u32 s{t0}, s{t6}, {HR}")
        E(f"buffer_store_dwordx4 {v(HBF,4)}, v{vT0}, {s(SWS,4)}, s{t0} offen sc1", tag="hrs")
        E(f"buffer_store_dwordx4 {v(HBF+4,4)}, v{vT0}, {s(SWS,4)}, s{t0} offen offset:1024 sc1", tag="hrs")
        self.stamp("C_st")
        if self.stop == "C":
            return self.finish()
        ACC, LN, WFR, GT = 64, 128, 16, 40
        B1R = 16
        E(f"v_lshrrev_b32 v{vT0}, 5, v{vL}"); E(f"v_lshlrev_b32 v{vT0}, 3, v{vT0}")
        E(f"s_mul_i32 s{t0}, s{sMU}, 224")
        for g4 in range(14):
            E(f"buffer_load_dwordx2 {v(B1R+2*g4,2)}, v{vT0}, {s(SB1,4)}, s{t0} offen offset:{16*g4}", tag="b1")
        for b in range(4, 7):
            self.w2_dma(b); self.w2_read(b, vA2)
        E.wait(vm="b1")
        for g4 in range(14):
            for h in range(2):
                E(f"v_lshlrev_b32 v{ACC+4*g4+2*h}, 16, v{B1R+2*g4+h}")
                E(f"v_and_b32 v{ACC+4*g4+2*h+1}, s{sMASK}, v{B1R+2*g4+h}")
        for r in range(56, 64): E(f"v_mov_b32 v{ACC+r}, 0")
        E(f"v_lshrrev_b32 v{vT0}, 5, v{vL}"); E(f"v_mul_u32_u24 v{vT0}, 1792, v{vT0}")
        E(f"v_and_b32 v{vT1}, 3, v{vL}"); E(f"v_lshl_add_u32 v{vT0}, v{vT1}, 3, v{vT0}")
        E(f"v_bfe_u32 v{vT1}, v{vL}, 2, 2"); E(f"v_lshl_add_u32 v{vT2}, v{vT1}, 5, v{vT0}")
        E(f"v_lshl_add_u32 v{vA0}, v{vT1}, 6, v{vT0}")
        E(f"v_bfe_u32 v{vT1}, v{vL}, 4, 1"); E(f"v_lshl_add_u32 v{vA0}, v{vT1}, 5, v{vA0}")
        E(f"v_add_u32 v{vA1}, 57344, v{vA0}"); E(f"v_add_u32 v{vT3}, 57344, v{vT2}")
        E(f"s_lshl_b32 s{t0}, s{sG}, 17"); E(f"s_lshl_b32 s{t1}, s{sW}, 15"); E(f"s_add_u32 s{t0}, s{t0}, s{t1}")
        E(f"s_add_u32 s{t0}, s{t0}, {LN2}")
        for b in range(8): E(f"s_add_u32 s{40+b}, s{t0}, {4096*b}")
        E.wait(vm=["w1", "lns"])
        E("s_barrier")
        lnl = [[f"buffer_load_dwordx4 {v(LN+16*b+4*x,4)}, v{vL16}, {s(SWS,4)}, s{40+b} offen offset:{1024*x} sc1" for x in range(4)] for b in range(8)]
        for b in range(8):
            for l in lnl[b]: E(l, tag=f"ln{b}")
        def w1rd(ks, Uu, dst, tag):
            ad = (vA0, vA1)[ks >= 16] if Uu < 3 else (vT2, vT3)[ks >= 16]
            for e2 in range(2):
                E(f"ds_read_b64_tr_b16 {v(dst+2*e2,2)}, v{ad} offset:{(ks%16)*3584+e2*896+Uu*256}", tag=tag)
        def mm32(d, x, y, first=False):
            E(f"v_mfma_f32_32x32x16_bf16 {v(d,16)}, {x}, {y}, {'0' if first else v(d,16)}")
        for grp, tiles in enumerate(((0, 1, 2), (3,))):
            for ti, Uu in enumerate(tiles): w1rd(0, Uu, WFR+4*ti, "k0")
            for ks in range(32):
                if grp == 0 and ks % 4 == 0:
                    b = ks//4
                    self.checked(lnl[b], list(range(LN+16*b, LN+16*b+16)), f"ln{b}", tmp=GT)
                    if b == 0: self.stamp("LN")
                if ks < 31:
                    for ti, Uu in enumerate(tiles): w1rd(ks+1, Uu, WFR+12*((ks+1) & 1)+4*ti, f"k{ks+1}")
                E.wait(lg=f"k{ks}")
                for ti, Uu in enumerate(tiles):
                    mm32(ACC+16*Uu, v(WFR+12*(ks & 1)+4*ti, 4), v(LN+4*ks, 4))
        self.stamp("G1mm")
        E(f"s_lshl_b32 s{t0}, s{sG}, 2"); E(f"s_add_u32 s{t0}, s{t0}, s{sW}"); E(f"s_lshl_b32 s{t0}, s{t0}, 4")
        E(f"s_add_u32 s{t0}, s{t0}, s{sMU}"); E(f"s_mul_i32 s{t0}, s{t0}, 7168"); E(f"s_add_u32 s{t0}, s{t0}, {HB}")
        E(f"s_add_u32 s{t1}, s{t0}, 4096")
        k2 = -2.0*math.sqrt(2.0/math.pi)*math.log2(math.e); k1 = k2*0.044715
        E(f"s_mov_b32 s{t2}, {lit(k1)}"); E(f"s_mov_b32 s{t3}, {lit(k1)}")
        E(f"v_mov_b32 v{GT+16}, {lit(k2)}"); E(f"v_mov_b32 v{GT+17}, {lit(k2)}")
        for u in range(7):
            b = ACC+8*u
            for h in range(0, 8, 2):
                E(f"v_pk_mul_f32 {v(GT+h,2)}, {v(b+h,2)}, {v(b+h,2)}")
            for h in range(0, 8, 2):
                E(f"v_pk_fma_f32 {v(GT+h,2)}, {v(GT+h,2)}, s[{t2}:{t2+1}], {v(GT+16,2)}")
            for h in range(0, 8, 2):
                E(f"v_pk_mul_f32 {v(GT+h,2)}, {v(GT+h,2)}, {v(b+h,2)}")
            for h in range(8): E(f"v_exp_f32 v{GT+h}, v{GT+h}")
            for h in range(0, 8, 2):
                E(f"v_pk_add_f32 {v(GT+h,2)}, {v(GT+h,2)}, 1.0 op_sel_hi:[1,0]")
            for h in range(8): E(f"v_rcp_f32 v{GT+h}, v{GT+h}")
            for h in range(0, 8, 2):
                E(f"v_pk_mul_f32 {v(GT+h,2)}, {v(GT+h,2)}, {v(b+h,2)}")
            o_ = GT+8+4*(u & 1)
            for h in range(4): E(f"v_cvt_pk_bf16_f32 v{o_+h}, v{GT+2*h}, v{GT+2*h+1}")
            E(f"buffer_store_dwordx4 {v(o_,4)}, v{vL16}, {s(SWS,4)}, s{t0 if u < 4 else t1} offen offset:{1024*(u%4)} sc1", tag="hs")
        self.stamp("G1_st")
        E(f"s_lshl_b32 s{t0}, s{sP}, 2"); E(f"s_add_u32 s{t0}, s{t0}, s{sW}"); E(f"s_lshl_b32 s{t0}, s{t0}, 6")
        E(f"s_add_u32 s{t0}, s{t0}, {F2}")
        E(f"v_mov_b32 v{vT0}, {hex(OOB)}"); E(f"v_mov_b32 v{vT1}, s{t0}")
        E(f"v_cmp_eq_u32 vcc, 0, v{vL}"); E(f"v_cndmask_b32 v{vT0}, v{vT0}, v{vT1}, vcc")
        E(f"v_mov_b32 v{vT1}, s{sTOK}")
        E.wait(vm=["hs", "hrs"])
        E(f"buffer_store_dword v{vT1}, v{vT0}, {s(SWS,4)}, 0 offen sc1", tag="f2s")
        if self.stop == "G1":
            return self.finish()
        E(f"s_lshl_b32 s{t0}, s{sG}, 12"); E(f"s_add_u32 s{t0}, s{t0}, {F2}")
        E(f"v_lshlrev_b32 v{vA0}, 6, v{vL}")
        f2load = f"buffer_load_dword v{GT}, v{vA0}, {s(SWS,4)}, s{t0} offen sc1"
        E(f"v_lshrrev_b32 v{vT0}, 4, v{vL}"); E(f"v_lshlrev_b32 v{vA1}, 15, v{vT0}")
        E(f"v_bfe_u32 v{vT0}, v{vL}, 3, 1"); E(f"v_lshl_add_u32 v{vA1}, v{vT0}, 10, v{vA1}")
        E(f"v_and_b32 v{vT0}, 7, v{vL}"); E(f"v_lshlrev_b32 v{vT1}, 4, v{vT0}"); E(f"v_add_u32 v{vA1}, v{vA1}, v{vT1}")
        E(f"s_lshl_b32 s46, s{sG}, 7"); E(f"s_lshr_b32 s{t1}, s{sMU}, 3"); E(f"s_lshl_b32 s{t1}, s{t1}, 4"); E(f"s_add_u32 s46, s46, s{t1}")
        E(f"s_lshl_b32 s{t1}, s{sW}, 1"); E(f"s_add_u32 s46, s46, s{t1}"); E(f"s_lshl_b32 s46, s46, 10")
        E(f"s_and_b32 s{t1}, s{sMU}, 7"); E(f"s_lshl_b32 s47, s{t1}, 7"); E(f"s_add_u32 s46, s46, s47")
        E(f"s_add_u32 s48, s46, {8*1024}"); E(f"s_add_u32 s49, s46, {HR}"); E(f"s_add_u32 s50, s48, {HR}")
        E(f"s_lshl_b32 s{t1}, s{sG}, 2"); E(f"s_lshr_b32 s{t2}, s{sMU}, 3"); E(f"s_lshl_b32 s{t2}, s{t2}, 1"); E(f"s_add_u32 s{t1}, s{t1}, s{t2}")
        E(f"s_lshl_b32 s{t1}, s{t1}, 4"); E(f"s_lshl_b32 s{t2}, s{sW}, 2"); E(f"s_add_u32 s{t1}, s{t1}, s{t2}")
        E(f"s_mul_i32 s{t1}, s{t1}, 7168"); E(f"s_add_u32 s52, s{t1}, {HB}"); E(f"s_add_u32 s53, s52, {16*7168}")
        E(f2load, tag="f2p")
        self.checked([f2load], [GT], "f2p", ref=sTOK)
        self.stamp("F2")
        HF = 128; EPI = 16
        def hload(li):
            tau, ks = divmod(li, 28)
            E(f"s_add_u32 s{t2}, s{52+tau}, {(ks//4)*4096}") if ks % 4 == 0 else None
            E(f"buffer_load_dwordx4 {v(HF+4*(li%32),4)}, v{vL16}, {s(SWS,4)}, s{t2} offen offset:{1024*(ks%4)} sc1", tag=f"h{li}")
        for li in range(32): hload(li)
        E(f"buffer_load_dwordx4 {v(EPI,4)}, v{vA1}, {s(SWS,4)}, s49 offen sc1", tag="epi")
        E(f"buffer_load_dwordx4 {v(EPI+4,4)}, v{vA1}, {s(SWS,4)}, s50 offen sc1", tag="epi")
        E(f"buffer_load_dwordx4 {v(EPI+8,4)}, v{vT1}, {s(SB2,4)}, s47 offen", tag="epi")
        E(f"v_and_b32 v{vT2}, 31, v{vL}"); E(f"v_lshrrev_b32 v{vT3}, 5, v{vL}"); E(f"v_xor_b32 v{vT3}, v{vT3}, v{vT2}")
        E(f"v_and_b32 v{vT3}, 7, v{vT3}"); E(f"v_lshlrev_b32 v{vT3}, 4, v{vT3}"); E(f"v_lshl_add_u32 v{vT2}, v{vT2}, 8, v{vT3}")
        E(f"s_lshl_b32 s{t3}, s{sW}, 13"); E(f"v_add_u32 v{vT2}, s{t3}, v{vT2}")
        WA = 28
        for x in range(4): E(f"v_xor_b32 v{WA+x}, {32*x}, v{vT2}")
        E(f"v_lshrrev_b32 v{vT2}, 3, v{vL}"); E(f"v_lshlrev_b32 v{vT3}, 1, v{vT0}"); E(f"v_xor_b32 v{vT3}, v{vT3}, v{vT2}")
        E(f"v_lshlrev_b32 v{vT3}, 4, v{vT3}"); E(f"v_lshl_add_u32 v{vT3}, v{vT2}, 8, v{vT3}")
        E(f"s_lshl_b32 s{t3}, s{sW}, 11"); E(f"v_add_u32 v{WA+4}, s{t3}, v{vT3}"); E(f"v_xor_b32 v{WA+5}, 16, v{WA+4}")
        for x in range(6): E(f"v_add_u32 v{WA+6+x}, {L_ST}, v{WA+x}")
        for li in range(56):
            tau, ks = divmod(li, 28)
            E.wait(vm=f"h{li}")
            for V in range(2):
                mm32(ACC+32*tau+16*V, a((ks*2+V)*4, 4), v(HF+4*(li % 32), 4), ks == 0)
            if li + 32 < 56: hload(li+32)
        self.stamp("G2mm")
        RD = 128
        for tau in range(2):
            wa = WA+6 if tau == 0 else WA
            for V in range(2):
                for a4 in range(4):
                    E(f"ds_write_b128 v{wa+a4}, {v(ACC+32*tau+16*V+4*a4,4)} offset:{128*V}", tag="r")
        E.wait(lg="r")
        E("s_barrier")
        E.wait(vm="epi")
        B2F = 40
        for r in range(4):
            E(f"v_lshlrev_b32 v{B2F+2*r}, 16, v{EPI+8+r}"); E(f"v_and_b32 v{B2F+2*r+1}, s{sMASK}, v{EPI+8+r}")
        for tau in range(2):
            ra = WA+10 if tau == 0 else WA+4
            for src in range(4):
                for x in range(2):
                    E(f"ds_read_b128 {v(RD+32*tau+8*src+4*x,4)}, v{ra+x} offset:{8192*src}", tag=f"r{tau}{src}")
        for tau in range(2):
            HX = 48
            for r in range(4):
                E(f"v_lshlrev_b32 v{HX+2*r}, 16, v{EPI+4*tau+r}"); E(f"v_and_b32 v{HX+2*r+1}, s{sMASK}, v{EPI+4*tau+r}")
            for h in range(0, 8, 2): E(f"v_pk_add_f32 {v(HX+h,2)}, {v(HX+h,2)}, {v(B2F+h,2)}")
            for src in range(4):
                E.wait(lg=f"r{tau}{src}")
                for h in range(0, 8, 2): E(f"v_pk_add_f32 {v(HX+h,2)}, {v(HX+h,2)}, {v(RD+32*tau+8*src+h,2)}")
            for r in range(4): E(f"v_cvt_pk_bf16_f32 v{56+4*tau+r}, v{HX+2*r}, v{HX+2*r+1}")
            E(f"buffer_store_dwordx4 {v(56+4*tau,4)}, v{vA1}, {s(SOUT,4)}, s{46 if tau == 0 else 48} offen", tag="out")
        return self.finish()
    def finish(self):
        E = self.E
        if self.prof:
            E.wait(vm="all")
            self.stamp("end")
            E(f"v_mov_b32 v{vT0}, 0")
            for i in range(self.nstamp): E(f"v_writelane_b32 v{vT0}, s{84+i}, {i}")
            E(f"s_lshl_b32 s{t0}, s2, 2"); E(f"s_add_u32 s{t0}, s{t0}, s{sW}"); E(f"s_lshl_b32 s{t0}, s{t0}, 8")
            E(f"s_add_u32 s{t0}, s{t0}, {PROF}")
            E(f"v_lshlrev_b32 v{vT1}, 2, v{vL}")
            E(f"buffer_store_dword v{vT0}, v{vT1}, {s(SWS,4)}, s{t0} offen")
        E.wait(vm="all", lg="all")
        E.label("L_end")
        E("s_endpgm")
        hdr = f"; @launch grid=(256,1,1) block=(256,1,1) lds={L_END}\n"
        hdr += '.amdgcn_target "amdgcn-amd-amdhsa--gfx950"\n.text\n'
        hdr += f".globl {KNAME}\n.p2align 8\n.type {KNAME},@function\n{KNAME}:\n"
        desc = f""".section .rodata,"a"
.p2align 6
.amdhsa_kernel {KNAME}
  .amdhsa_next_free_vgpr 512
  .amdhsa_next_free_sgpr 102
  .amdhsa_accum_offset 256
  .amdhsa_group_segment_fixed_size 0
  .amdhsa_kernarg_size 88
  .amdhsa_user_sgpr_count 2
  .amdhsa_user_sgpr_kernarg_segment_ptr 1
  .amdhsa_system_sgpr_workgroup_id_x 1
  .amdhsa_float_denorm_mode_32 3
.end_amdhsa_kernel
"""
        return hdr + E.text() + desc

if __name__ == "__main__":
    import argparse
    ap = argparse.ArgumentParser()
    ap.add_argument("-o", default="sequential_preLN__spectral_gfnet__mixer_channel_mlp__prompt.s")
    ap.add_argument("--prof", action="store_true")
    ap.add_argument("--stop", default=None)
    args = ap.parse_args()
    k = K(prof=args.prof, stop=args.stop)
    txt = k.build()
    open(args.o, "w").write(txt)
    if args.prof: open(args.o + ".names", "w").write(" ".join(k.names))
    print("wrote", args.o, len(txt), "bytes; nops inserted:", k.E.nnop)
```

```python
import sys, math
from emit import Emit, v, a, s
KNAME = "sequential_preLN__spectral_gfnet__mixer_channel_mlp__prompt_kernel"
MB = 1 << 20
X1, X2, WT, LN2, HR, HB = 0, 2*MB, 4*MB, 6*MB, 8*MB, 10*MB
F1 = 18*MB; F2 = F1 + 16384; EP = F1 + 65536; PROF = 19*MB; WS_SIZE = 20*MB
L_W1, L_ST, L_SA, L_SB, L_END = 0, 114688, 147456, 155648, 163840
SX, SWS, SW1, SW2, SOUT, SWR, SWI, SB1, SB2 = 4, 8, 12, 16, 20, 24, 28, 32, 36
KA = 40
sJ, sT, sG, sMU, sP, sW, sTOK, sTO = 62, 63, 64, 65, 66, 67, 68, 69
t0, t1, t2, t3, t4, t5, t6, t7 = 70, 71, 72, 73, 74, 75, 76, 77
sMASK, sONES = 78, 79
sSTAMP = 82
vTID, vL, vN, vQ = 0, 1, 2, 3
vGA, vL16, vA0, vA1, vA2, vA3, vA4, vA5, vT0, vT1, vT2, vT3 = 4, 5, 6, 7, 8, 9, 10, 11, 12, 13, 14, 15
F32 = 16
TWA = 56
XC = 72
OOB = 0x7ffffff0

def f32bits(x):
    import struct
    return struct.unpack("<I", struct.pack("<f", x))[0]
def lit(x): return hex(f32bits(x))

class K:
    def __init__(self, prof=False, stop=None, opts=None):
        self.E = Emit(); self.prof = prof; self.stop = stop; self.nstamp = 0; self.names = []
        self.o = dict(opts or {})
    def stamp(self, name):
        if not self.prof: return
        E = self.E
        assert self.nstamp < 16
        E(f"s_memrealtime s[{sSTAMP}:{sSTAMP+1}]")
        E("s_waitcnt lgkmcnt(0)")
        E(f"s_mov_b32 s{84+self.nstamp}, s{sSTAMP}")
        self.names.append(name); self.nstamp += 1
    def srd(self, dst, base, nbytes):
        E = self.E
        E(f"s_mov_b32 s{dst}, s{base}"); E(f"s_mov_b32 s{dst+1}, s{base+1}")
        E(f"s_mov_b32 s{dst+2}, {hex(nbytes)}"); E(f"s_mov_b32 s{dst+3}, 0x00020000")
    def checked(self, loads, regs, tag, tmp=vT0, ref=None):
        E = self.E
        lr, lc = E.newlabel("L_retry"), E.newlabel("L_cont")
        def test(emit):
            if ref is None:
                R = list(regs)
                if len(R) == 1: emit(f"v_cmp_eq_u32 vcc, -1, v{R[0]}"); return
                emit(f"v_max3_u32 v{tmp}, v{R[0]}, v{R[1]}, v{R[2] if len(R) > 2 else R[1]}"); R = R[3:]
                while R:
                    emit(f"v_max3_u32 v{tmp}, v{tmp}, v{R[0]}, v{R[1] if len(R) > 1 else R[0]}"); R = R[2:]
                emit(f"v_cmp_eq_u32 vcc, -1, v{tmp}")
            else:
                emit(f"v_cmp_ne_u32 vcc, s{ref}, v{regs[0]}")
        E.wait(vm=tag)
        test(E)
        E(f"s_cbranch_vccnz {lr}")
        E.label(lc)
        o = [f"{lr}:", "    s_nop 7", "    s_nop 7", f"    s_sub_u32 s{sTO}, s{sTO}, 1", f"    s_cbranch_scc1 {lr}_to"]
        o += ["    " + l for l in loads]
        o += ["    s_waitcnt vmcnt(0)"]
        test(lambda t: o.append("    " + t))
        o += [f"    s_cbranch_vccnz {lr}", "    s_nop 7", f"    s_branch {lc}",
              f"{lr}_to:", f"    s_mov_b32 s{sTO}, 0", "    s_nop 7", f"    s_branch {lc}"]
        E.ool += o
    def sincos(self, ang, c, sn, tmp):
        E = self.E
        E(f"v_fract_f32 v{tmp}, v{ang}")
        E(f"v_cos_f32 v{c}, v{tmp}")
        E(f"v_sin_f32 v{sn}, v{tmp}")
    def cmul_pk(self, dr, di, xr, xi, c, sn, t, conj):
        E = self.E
        E(f"v_pk_mul_f32 {v(t,2)}, {v(xi,2)}, {v(sn,2)}")
        E(f"v_pk_mul_f32 {v(t+2,2)}, {v(xr,2)}, {v(sn,2)}")
        n = " neg_lo:[0,0,1] neg_hi:[0,0,1]"
        E(f"v_pk_fma_f32 {v(dr,2)}, {v(xr,2)}, {v(c,2)}, {v(t,2)}" + (n if conj else ""))
        E(f"v_pk_fma_f32 {v(di,2)}, {v(xi,2)}, {v(c,2)}, {v(t+2,2)}" + ("" if conj else n))
    def ln_reduce(self, sa, qa, sb, qb, R, fill=()):
        E = self.E; fill = list(fill)
        def f(n=1):
            for _ in range(n):
                if fill: E(fill.pop(0))
        f(2)
        E(f"v_permlane32_swap_b32 v{sa}, v{sb}")
        E(f"v_permlane32_swap_b32 v{qa}, v{qb}")
        E(f"v_add_f32 v{sa}, v{sa}, v{sb}")
        E(f"v_add_f32 v{qa}, v{qa}, v{qb}")
        f(2)
        E(f"v_permlane16_swap_b32 v{sa}, v{qa}")
        E(f"v_add_f32 v{sa}, v{sa}, v{qa}")
        for r in (8, 4, 2, 1):
            f(2)
            E(f"v_add_f32_dpp v{sa}, v{sa}, v{sa} row_ror:{r} row_mask:0xf bank_mask:0xf")
        E(f"v_mov_b32 v{qa}, v{sa}")
        f(2)
        E(f"v_permlane16_swap_b32 v{sa}, v{qa}")
        E(f"v_mul_f32 v{sa}, {lit(1/512)}, v{sa}")
        E(f"v_mul_f32 v{sb}, v{sa}, v{sa}")
        E(f"v_fma_f32 v{qa}, v{qa}, s{t7}, -v{sb}")
        E(f"v_max_f32 v{qa}, 0, v{qa}")
        E(f"v_add_f32 v{qa}, {lit(1e-5)}, v{qa}")
        E(f"v_rsq_f32 v{R}, v{qa}")
        f(1)
        E(f"v_mul_f32 v{R+1}, v{sa}, v{R}")
        E(f"v_sub_f32 v{R+1}, 0, v{R+1}")
        E(f"v_mov_b32 v{R+2}, v{R}")
        E(f"v_mov_b32 v{R+3}, v{R+1}")
        f(2)
        E(f"v_permlane32_swap_b32 v{R}, v{R+2}")
        E(f"v_permlane32_swap_b32 v{R+1}, v{R+3}")
        f(len(fill))
    def mm16(self, d, x, y, first):
        self.E(f"v_mfma_f32_16x16x32_bf16 {v(d,4)}, {v(x,4)}, {v(y,4)}, {'0' if first else v(d,4)}")
    def f32w(self, T, p, win):
        return F32 + (T*2+p)*10 + {"fi": 0, "fr": 2, "ii": 4, "ir": 6}[win]
    def const_f32(self):
        E = self.E; c = 200; sn = 204; ang = 208; tmp = 209; st = 210
        for T in range(2):
            E(f"v_lshlrev_b32 v{st}, 1, v{vN}")
            if T: E(f"v_add_u32 v{st}, 1, v{st}")
            E(f"v_cvt_f32_u32 v{st}, v{st}")
            E(f"v_mul_f32 v{st}, {lit(1/32)}, v{st}")
            for p in range(2):
                E(f"v_lshlrev_b32 v{ang}, 3, v{vQ}")
                if p: E(f"v_add_u32 v{ang}, 1, v{ang}")
                E(f"v_cvt_f32_u32 v{ang}, v{ang}")
                E(f"v_mul_f32 v{ang}, v{ang}, v{st}")
                for i in range(4):
                    if i: E(f"v_fma_f32 v{ang}, v{st}, 2.0, v{ang}")
                    self.sincos(ang, c+i, sn+i, tmp)
                b = F32 + (T*2+p)*10
                E(f"v_cvt_pk_bf16_f32 v{b+2}, v{c}, v{c+1}")
                E(f"v_cvt_pk_bf16_f32 v{b+3}, v{c+2}, v{c+3}")
                E(f"v_cvt_pk_bf16_f32 v{b+4}, v{sn}, v{sn+1}")
                E(f"v_cvt_pk_bf16_f32 v{b+5}, v{sn+2}, v{sn+3}")
                E(f"v_cvt_pk_bf16_f32 v{b+0}, -v{sn}, -v{sn+1}")
                E(f"v_cvt_pk_bf16_f32 v{b+1}, -v{sn+2}, -v{sn+3}")
                E(f"v_mov_b64 {v(b+6,2)}, {v(b+2,2)}")
                E(f"v_mov_b64 {v(b+8,2)}, {v(b+0,2)}")
    def const_twa(self):
        E = self.E; st = 210; ang = 208; tmp = 209
        E(f"v_cvt_f32_u32 v{st}, v{vN}")
        E(f"v_mul_f32 v{st}, {lit(1/512)}, v{st}")
        for p in range(2):
            E(f"v_lshlrev_b32 v{ang}, 3, v{vQ}")
            if p: E(f"v_add_u32 v{ang}, 1, v{ang}")
            E(f"v_cvt_f32_u32 v{ang}, v{ang}")
            E(f"v_mul_f32 v{ang}, v{ang}, v{st}")
            for i in range(4):
                if i: E(f"v_fma_f32 v{ang}, v{st}, 2.0, v{ang}")
                self.sincos(ang, TWA+4*p+i, TWA+8+4*p+i, tmp)
    def const_f16(self, dst, interleaved):
        E = self.E; c = 200; sn = 204; ang = 208; tmp = 209; st = 210
        E(f"v_cvt_f32_u32 v{st}, v{vN}")
        E(f"v_mul_f32 v{st}, {lit(1/16)}, v{st}")
        E(f"v_lshlrev_b32 v{ang}, 2, v{vQ}")
        E(f"v_cvt_f32_u32 v{ang}, v{ang}")
        E(f"v_mul_f32 v{ang}, v{ang}, v{st}")
        for i in range(4):
            if i: E(f"v_add_f32 v{ang}, v{ang}, v{st}")
            self.sincos(ang, c+i, sn+i, tmp)
        if not interleaved:
            E(f"v_cvt_pk_bf16_f32 v{dst+2}, v{c}, v{c+1}")
            E(f"v_cvt_pk_bf16_f32 v{dst+3}, v{c+2}, v{c+3}")
            E(f"v_cvt_pk_bf16_f32 v{dst+4}, v{sn}, v{sn+1}")
            E(f"v_cvt_pk_bf16_f32 v{dst+5}, v{sn+2}, v{sn+3}")
            E(f"v_cvt_pk_bf16_f32 v{dst+0}, -v{sn}, -v{sn+1}")
            E(f"v_cvt_pk_bf16_f32 v{dst+1}, -v{sn+2}, -v{sn+3}")
        else:
            for i in range(4):
                E(f"v_cvt_pk_bf16_f32 v{dst+i}, v{c+i}, -v{sn+i}")
                E(f"v_cvt_pk_bf16_f32 v{dst+4+i}, v{sn+i}, v{c+i}")
    def const_f64(self, dst):
        E = self.E; c = 240; sn = 241; ang = 242; tmp = 243; st = 244; a0 = 245
        E(f"s_lshl_b32 s{t0}, s{sW}, 4")
        E(f"v_add_u32 v{st}, s{t0}, v{vN}")
        E(f"v_cvt_f32_u32 v{st}, v{st}")
        E(f"v_mul_f32 v{st}, {lit(1/64)}, v{st}")
        E(f"v_lshlrev_b32 v{a0}, 2, v{vQ}")
        E(f"v_cvt_f32_u32 v{a0}, v{a0}")
        for j in range(4):
            if j: E(f"v_add_f32 v{a0}, {lit(16.0)}, v{a0}")
            E(f"v_mul_f32 v{ang}, v{a0}, v{st}")
            for i in range(4):
                if i: E(f"v_add_f32 v{ang}, v{ang}, v{st}")
                self.sincos(ang, c, sn, tmp)
                b = dst + 16*j + i
                E(f"v_cvt_pk_bf16_f32 v{b+0}, v{c}, v{sn}")
                E(f"v_cvt_pk_bf16_f32 v{b+4}, -v{sn}, v{c}")
                E(f"v_cvt_pk_bf16_f32 v{b+8}, v{c}, -v{sn}")
                E(f"v_cvt_pk_bf16_f32 v{b+12}, v{sn}, v{c}")
    def const_twb(self, fw, iv):
        E = self.E; ang = 242; tmp = 243; st = 244; a0 = 245
        E(f"s_lshl_b32 s{t0}, s{sW}, 4")
        E(f"v_add_u32 v{st}, s{t0}, v{vN}")
        E(f"v_cvt_f32_u32 v{st}, v{st}")
        E(f"v_mul_f32 v{st}, {lit(1/2048)}, v{st}")
        E(f"v_lshlrev_b32 v{a0}, 3, v{vQ}")
        E(f"v_cvt_f32_u32 v{a0}, v{a0}")
        E(f"v_mul_f32 v{ang}, v{a0}, v{st}")
        for i in range(4):
            for p in range(2):
                if i or p: E(f"v_add_f32 v{ang}, v{ang}, v{st}")
                self.sincos(ang, fw+8*p+i, fw+8*p+4+i, tmp)
        for r in range(0, 16, 2):
            E(f"v_pk_mul_f32 {v(fw+r,2)}, {v(fw+r,2)}, s[{t4}:{t4+1}]")
        E(f"v_lshlrev_b32 v{a0}, 2, v{vQ}")
        E(f"v_add_u32 v{a0}, s{t0}, v{a0}")
        E(f"v_cvt_f32_u32 v{a0}, v{a0}")
        E(f"v_mul_f32 v{a0}, {lit(1/2048)}, v{a0}")
        E(f"v_lshlrev_b32 v{st}, 1, v{vN}")
        E(f"v_cvt_f32_u32 v{st}, v{st}")
        for i in range(4):
            if i: E(f"v_add_f32 v{a0}, {lit(1/2048)}, v{a0}")
            E(f"v_mul_f32 v{ang}, v{a0}, v{st}")
            self.sincos(ang, iv+i, iv+4+i, tmp)
            E(f"v_add_f32 v{ang}, v{ang}, v{a0}")
            self.sincos(ang, iv+8+i, iv+12+i, tmp)
        for r in range(0, 16, 2):
            E(f"v_pk_mul_f32 {v(iv+r,2)}, {v(iv+r,2)}, s[{t2}:{t2+1}]")
    def w1_dma(self, units):
        E = self.E
        E("s_bfm_b64 exec, 56, 0")
        for u in units:
            gl, e2 = u >> 1, u & 1
            n, q = gl >> 2, gl & 3
            E(f"s_add_u32 m0, s80, {u*896}")
            E(f"s_add_u32 s{t0}, s81, {(32*n+16*e2+4*q)*3584}")
            E(f"buffer_load_dwordx4 v{vA4}, {s(SW1,4)}, s{t0} offen lds", tag="w1")
        E("s_mov_b64 exec, -1")
    def w2_dma(self, b):
        E = self.E
        for x in range(8):
            E(f"s_add_u32 m0, s100, {x*1024}")
            E(f"s_add_u32 s{t0}, s101, {(64*b+8*x)*1024}")
            E(f"buffer_load_dwordx4 v{vA5}, {s(SW2,4)}, s{t0} offen lds", tag=f"w2_{b}")
    def w2_read(self, b, addr):
        E = self.E
        E.wait(vm=f"w2_{b}")
        for ksl in range(4):
            for V in range(2):
                for e2 in range(2):
                    d = ((4*b+ksl)*2+V)*4 + 2*e2
                    E(f"ds_read_b64_tr_b16 {a(d,2)}, v{addr} offset:{ksl*2048+e2*1024+V*256}", tag="w2r")
        E.wait(lg="w2r")
    def build(self):
        E = self.E; o = self.o
        E("s_cmp_ge_u32 s2, 256")
        E("s_cbranch_scc1 L_end")
        E(f"s_load_dwordx16 s[{KA}:{KA+15}], s[0:1], 0")
        E(f"s_load_dwordx4 s[{KA+16}:{KA+19}], s[0:1], 64")
        E(f"s_load_dwordx2 s[{KA+20}:{KA+21}], s[0:1], 80")
        if self.prof:
            E(f"s_memrealtime s[{sSTAMP}:{sSTAMP+1}]")
        E(f"v_lshrrev_b32 v{vT0}, 6, v0")
        E(f"v_and_b32 v{vL}, 63, v0")
        E(f"v_readfirstlane_b32 s{sW}, v{vT0}")
        E(f"v_and_b32 v{vN}, 15, v0")
        E(f"v_lshrrev_b32 v{vQ}, 4, v{vL}")
        E(f"s_and_b32 s{sJ}, s2, 7"); E(f"s_lshr_b32 s{sT}, s2, 3")
        E(f"s_lshl_b32 s{sP}, s{sJ}, 5"); E(f"s_add_u32 s{sP}, s{sP}, s{sT}")
        E(f"s_lshr_b32 s{sG}, s{sP}, 4"); E(f"s_and_b32 s{sMU}, s{sP}, 15")
        E(f"s_mov_b32 s{sTO}, 200000")
        E(f"s_mov_b32 s{sMASK}, 0xffff0000"); E(f"s_mov_b32 s{sONES}, 0x3f803f80")
        E(f"s_mov_b32 s{t7}, {lit(1/512)}")
        E(f"v_lshlrev_b32 v{vL16}, 4, v{vL}")
        E(f"v_and_b32 v{vT0}, 31, v{vL}"); E(f"v_lshrrev_b32 v{vT1}, 5, v{vL}")
        E(f"v_lshlrev_b32 v{vGA}, 13, v{vT0}"); E(f"v_lshl_add_u32 v{vGA}, v{vT1}, 4, v{vGA}")
        E(f"v_lshlrev_b32 v{vA0}, 8, v{vQ}"); E(f"v_lshl_add_u32 v{vA0}, v{vN}, 2, v{vA0}")
        E(f"s_lshl_b32 s{t0}, s{sG}, 7"); E(f"s_lshl_b32 s{t1}, s{sW}, 5"); E(f"s_add_u32 s{t0}, s{t0}, s{t1}")
        E(f"s_lshl_b32 s{t1}, s{sMU}, 1"); E(f"s_add_u32 s{t0}, s{t0}, s{t1}"); E(f"s_lshl_b32 s{t6}, s{t0}, 10")
        F16A = 80
        self.const_f16(F16A, False)
        self.const_twa()
        E("s_waitcnt lgkmcnt(0)")
        if self.prof:
            E(f"s_mov_b32 s84, s{sSTAMP}"); self.names.append("start"); self.nstamp = 1
        self.stamp("karg")
        self.srd(SX, KA+0, 2097152)
        XR = 86
        for r in range(2):
            for i in range(4):
                E(f"buffer_load_dword v{XR+4*r+i}, v{vA0}, {s(SX,4)}, s{t6} offen offset:{1024*r+64*i}", tag="x")
        self.srd(SWS, KA+20, WS_SIZE)
        CL = 96
        for r in range(4): E(f"v_mov_b32 v{CL+r}, -1")
        E(f"v_lshlrev_b32 v{vA1}, 4, v0")
        E(f"s_lshl_b32 s{t0}, s{sP}, 13")
        E(f"buffer_store_dwordx4 {v(CL,4)}, v{vA1}, {s(SWS,4)}, s{t0} offen sc1", tag="clr")
        E(f"s_add_u32 s{t1}, s{t0}, 4096")
        E(f"buffer_store_dwordx4 {v(CL,4)}, v{vA1}, {s(SWS,4)}, s{t1} offen sc1", tag="clr")
        E(f"v_bfe_u32 v{vT0}, v{vL}, 4, 1"); E(f"v_lshlrev_b32 v{vA2}, 9, v{vT0}")
        E(f"v_lshl_add_u32 v{vA2}, v{vN}, 5, v{vA2}")
        E(f"v_lshrrev_b32 v{vT0}, 5, v{vL}"); E(f"v_lshl_add_u32 v{vA2}, v{vT0}, 4, v{vA2}")
        E(f"s_lshl_b32 s{t1}, s{sW}, 11"); E(f"s_add_u32 s{t1}, s{t1}, s{t0}"); E(f"s_add_u32 s{t1}, s{t1}, {X2}")
        E(f"buffer_store_dwordx4 {v(CL,4)}, v{vA2}, {s(SWS,4)}, s{t1} offen sc1", tag="clr")
        E(f"buffer_store_dwordx4 {v(CL,4)}, v{vA2}, {s(SWS,4)}, s{t1} offen offset:1024 sc1", tag="clr")
        E(f"v_lshrrev_b32 v{vT0}, 3, v0"); E(f"v_lshlrev_b32 v{vA3}, 13, v{vT0}")
        E(f"v_and_b32 v{vT0}, 7, v0"); E(f"v_lshl_add_u32 v{vA3}, v{vT0}, 4, v{vA3}")
        def wt_soff(d, tmp):
            E(f"s_lshr_b32 s{d}, s{sP}, 2"); E(f"s_lshl_b32 s{d}, s{d}, 7")
            E(f"s_and_b32 s{tmp}, s{sP}, 3"); E(f"s_lshl_b32 s{tmp}, s{tmp}, 19")
            E(f"s_add_u32 s{d}, s{d}, s{tmp}"); E(f"s_add_u32 s{d}, s{d}, {WT}")
        wt_soff(t1, t2)
        E(f"buffer_store_dwordx4 {v(CL,4)}, v{vA3}, {s(SWS,4)}, s{t1} offen sc1", tag="clr")
        E(f"s_add_u32 s{t1}, s{t1}, {32*8192}")
        E(f"buffer_store_dwordx4 {v(CL,4)}, v{vA3}, {s(SWS,4)}, s{t1} offen sc1", tag="clr")
        EPV = 100
        E(f"v_mov_b32 v{vT0}, {hex(EP)}")
        E(f"buffer_load_dword v{EPV}, v{vT0}, {s(SWS,4)}, 0 offen sc1", tag="clr")
        self.srd(SWR, KA+2, 2048*514); self.srd(SWI, KA+4, 2048*514)
        E(f"s_lshr_b32 s{t0}, s{sP}, 6"); E(f"s_lshl_b32 s{t0}, s{t0}, 4")
        E(f"s_bfe_u32 s{t1}, s{sP}, 0x10002"); E(f"s_lshl_b32 s{t1}, s{t1}, 3"); E(f"s_add_u32 s{t0}, s{t0}, s{t1}")
        E(f"s_bfe_u32 s{t1}, s{sP}, 0x20003"); E(f"s_lshl_b32 s{t1}, s{t1}, 9"); E(f"s_add_u32 s{t0}, s{t0}, s{t1}")
        E(f"s_bfe_u32 s{t1}, s{sP}, 0x10005"); E(f"s_lshl_b32 s{t1}, s{t1}, 8"); E(f"s_add_u32 s{t0}, s{t0}, s{t1}")
        E(f"s_lshl_b32 s{t1}, s{sW}, 1"); E(f"s_add_u32 s{t0}, s{t0}, s{t1}")
        E(f"s_mul_i32 s{t0}, s{t0}, 514")
        E(f"s_and_b32 s{t1}, s{sP}, 3"); E(f"s_lshl_b32 s{t1}, s{t1}, 7"); E(f"s_add_u32 s{t0}, s{t0}, s{t1}")
        E(f"s_add_u32 s{t0}, s{t0}, 2")
        E(f"v_lshlrev_b32 v{vT1}, 1, v{vL}")
        WRW = 150
        for jj in range(4):
            for dn in range(2):
                E(f"buffer_load_ushort v{WRW+4*dn+jj}, v{vT1}, {s(SWR,4)}, s{t0} offen offset:{514*dn}", tag="W")
                E(f"buffer_load_ushort v{WRW+8+4*dn+jj}, v{vT1}, {s(SWI,4)}, s{t0} offen offset:{514*dn}", tag="W")
            if jj < 3: E(f"s_add_u32 s{t0}, s{t0}, {64*514}")
        E(f"v_lshlrev_b32 v{vT2}, 6, v{vN}"); E(f"v_lshl_add_u32 v{vT2}, v{vQ}, 3, v{vT2}")
        for r in range(2):
            for T in range(2):
                E(f"buffer_load_dwordx2 {v(XC+4*r+2*T,2)}, v{vT2}, {s(SX,4)}, s{t6} offen offset:{1024*r+32*T}", tag="W")
        self.srd(SW1, KA+8, 512*1792*2); self.srd(SW2, KA+12, 1792*512*2); self.srd(SOUT, KA+16, 2097152)
        self.srd(SB1, KA+10, 1792*2); self.srd(SB2, KA+14, 512*2)
        E(f"v_bfe_u32 v{vT0}, v{vL}, 2, 2"); E(f"v_mul_u32_u24 v{vA4}, 3584, v{vT0}")
        E(f"v_lshl_add_u32 v{vA4}, v{vQ}, 6, v{vA4}")
        E(f"v_and_b32 v{vT0}, 3, v{vL}"); E(f"v_lshl_add_u32 v{vA4}, v{vT0}, 4, v{vA4}")
        E(f"v_bfe_u32 v{vT0}, v{vL}, 1, 2"); E(f"v_mul_u32_u24 v{vT0}, 3584, v{vT0}")
        E(f"v_and_b32 v{vT3}, 1, v{vL}"); E(f"v_lshl_add_u32 v{vT0}, v{vT3}, 4, v{vT0}")
        E(f"v_add_u32 v{vT0}, 192, v{vT0}")
        E(f"v_cmp_le_u32 vcc, 48, v{vL}")
        E(f"v_cndmask_b32 v{vA4}, v{vA4}, v{vT0}, vcc")
        E(f"s_mul_i32 s80, s{sW}, {32*896}")
        E(f"s_mul_i32 s81, s{sW}, {128*3584}"); E(f"s_mul_i32 s{t0}, s{sMU}, 224"); E(f"s_add_u32 s81, s81, s{t0}")
        E(f"v_lshrrev_b32 v{vT0}, 5, v{vL}"); E(f"v_lshlrev_b32 v{vA5}, 12, v{vT0}")
        E(f"v_bfe_u32 v{vT0}, v{vL}, 2, 2"); E(f"v_lshl_add_u32 v{vA5}, v{vT0}, 10, v{vA5}")
        E(f"v_bfe_u32 v{vT0}, v{vL}, 4, 1"); E(f"v_lshl_add_u32 v{vA5}, v{vT0}, 6, v{vA5}")
        E(f"v_and_b32 v{vT0}, 3, v{vL}"); E(f"v_lshl_add_u32 v{vA5}, v{vT0}, 4, v{vA5}")
        E(f"s_lshl_b32 s100, s{sW}, 13"); E(f"s_add_u32 s100, s100, {L_ST}")
        E(f"s_mul_i32 s101, s{sW}, {448*1024}"); E(f"s_and_b32 s{t0}, s{sMU}, 7"); E(f"s_lshl_b32 s{t0}, s{t0}, 7")
        E(f"s_add_u32 s101, s101, s{t0}")
        self.const_f32()
        E.wait(vm="x")
        self.stamp("x")
        sa, qa, sb, qb = 110, 111, 112, 113
        for i in range(4):
            for (r, S_, Q_) in ((0, sa, qa), (1, sb, qb)):
                x = XR+4*r+i
                E(f"v_dot2_f32_bf16 v{S_}, v{x}, s{sONES}, {'0' if i == 0 else v(S_)}")
                E(f"v_dot2_f32_bf16 v{Q_}, v{x}, v{x}, {'0' if i == 0 else v(Q_)}")
        U = 130
        fill = []
        for r in range(2):
            for i in range(4):
                fill.append(f"v_lshlrev_b32 v{U+8*r+i}, 16, v{XR+4*r+i}")
                fill.append(f"v_and_b32 v{U+8*r+4+i}, s{sMASK}, v{XR+4*r+i}")
        RR = 114
        self.ln_reduce(sa, qa, sb, qb, RR, fill)
        E.wait(vm="clr")
        E("s_barrier")
        E(f"v_readfirstlane_b32 s{sTOK}, v{EPV}")
        for r in range(2):
            for h in range(0, 8, 2):
                E(f"v_pk_fma_f32 {v(U+8*r+h,2)}, {v(U+8*r+h,2)}, {v(RR+2*r,2)}, {v(RR+2*r,2)} op_sel:[0,0,1] op_sel_hi:[1,0,1]")
        E(f"s_add_u32 s{t5}, s{sTOK}, 1")
        E(f"s_add_u32 s{sTOK}, s{sTOK}, 0x5bd1e995")
        OP = 122
        for p in range(2):
            for r in range(2):
                for h in range(2):
                    E(f"v_cvt_pk_bf16_f32 v{OP+4*p+2*r+h}, v{U+8*r+4*p+2*h}, v{U+8*r+4*p+2*h+1}")
        AC = 170
        for p in range(2):
            self.mm16(AC+4*p, OP+4*p, F16A+2, True)
            self.mm16(AC+8+4*p, OP+4*p, F16A+0, True)
        E(f"s_lshl_b32 s{t0}, s{sP}, 6"); E(f"s_add_u32 s{t0}, s{t0}, {F1}")
        E(f"v_mov_b32 v{vT0}, {hex(OOB)}"); E(f"v_mov_b32 v{vT1}, s{t0}")
        E(f"v_cmp_eq_u32 vcc, 0, v0"); E(f"v_cndmask_b32 v{vT0}, v{vT0}, v{vT1}, vcc")
        E(f"v_mov_b32 v{vT1}, s{sTOK}")
        E(f"buffer_store_dword v{vT1}, v{vT0}, {s(SWS,4)}, 0 offen sc1", tag="f1s")
        TM = 186; Y = 130
        for p in range(2):
            for h in range(0, 4, 2):
                self.cmul_pk(Y+4*p+h, Y+8+4*p+h, AC+4*p+h, AC+8+4*p+h, TWA+4*p+h, TWA+8+4*p+h, TM, False)
        for p in range(2):
            for part in range(2):
                for h in range(2):
                    E(f"v_cvt_pk_bf16_f32 v{OP+4*p+2*part+h}, v{Y+8*part+4*p+2*h}, v{Y+8*part+4*p+2*h+1}")
        for p in range(2):
            for T in range(2):
                self.mm16(AC+4*T, self.f32w(T, p, "fr"), OP+4*p, p == 0)
                self.mm16(AC+8+4*T, self.f32w(T, p, "fi"), OP+4*p, p == 0)
        E(f"v_lshlrev_b32 v{vT2}, 9, v{vQ}"); E(f"v_lshl_add_u32 v{vT2}, v{vN}, 2, v{vT2}")
        E(f"s_lshl_b32 s{t0}, s{sW}, 11"); E(f"s_add_u32 s{t0}, s{t0}, {L_SA}"); E(f"v_add_u32 v{vT2}, s{t0}, v{vT2}")
        E(f"v_lshrrev_b32 v{vT0}, 1, v0"); E(f"v_add_u32 v{vT3}, 1, v{vT0}"); E(f"v_sub_u32 v{vT0}, 511, v{vT0}")
        E(f"v_and_b32 v{vT1}, 1, v0"); E(f"v_cmp_eq_u32 vcc, 1, v{vT1}")
        E(f"v_add_u32 v{Y}, 128, v{vT3}"); E(f"v_subrev_u32 v{Y+1}, 128, v{vT0}")
        E(f"v_cndmask_b32 v{vT3}, v{vT3}, v{vT0}, vcc"); E(f"v_cndmask_b32 v{vT0}, v{Y}, v{Y+1}, vcc")
        E(f"v_lshlrev_b32 v{vT3}, 2, v{vT3}"); E(f"v_lshlrev_b32 v{vT0}, 2, v{vT0}")
        E(f"v_add_u32 v{vT3}, {L_SA}, v{vT3}"); E(f"v_add_u32 v{vT0}, {L_SA}, v{vT0}")
        for T in range(2):
            for i in range(4):
                E(f"v_cvt_pk_bf16_f32 v{Y+4*T+i}, v{AC+4*T+i}, v{AC+8+4*T+i}")
                E(f"ds_write_b32 v{vT2}, v{Y+4*T+i} offset:{128*i+64*T}", tag="a")
        FP = 101
        E(f"s_lshl_b32 s{t0}, s{sW}, 12"); E(f"s_add_u32 s{t0}, s{t0}, {F1}")
        E(f"v_lshlrev_b32 v{vA0}, 6, v{vL}")
        f1load = f"buffer_load_dword v{FP}, v{vA0}, {s(SWS,4)}, s{t0} offen sc1"
        E(f"s_mov_b32 s{t3}, s{t0}")
        f1load = f1load.replace(f"s{t0} offen", f"s{t3} offen")
        E(f1load, tag="f1p")
        E.wait(lg="a")
        E("s_barrier")
        D = 138
        for h, ad in ((0, vT3), (1, vT0)):
            E(f"ds_read2st64_b32 {v(D+4*h,2)}, v{ad} offset0:0 offset1:8", tag=f"a{h}")
            E(f"ds_read2st64_b32 {v(D+4*h+2,2)}, v{ad} offset0:16 offset1:24", tag=f"a{h}")
        E(f"s_lshl_b32 s{t0}, s{sP}, 13"); E(f"s_add_u32 s{t1}, s{t0}, 4096")
        E.wait(lg="a0")
        E(f"buffer_store_dwordx4 {v(D,4)}, v{vA1}, {s(SWS,4)}, s{t0} offen sc1", tag="x1s")
        E.wait(lg="a1")
        E(f"buffer_store_dwordx4 {v(D+4,4)}, v{vA1}, {s(SWS,4)}, s{t1} offen sc1", tag="x1s")
        self.stamp("A_st")
        E.wait(vm="W")
        for r in range(8):
            E(f"v_lshl_or_b32 v{WRW+r}, v{WRW+8+r}, 16, v{WRW+r}")
        E(f"s_lshl_b32 s{t0}, s{sW}, 1"); E(f"v_and_b32 v{vT0}, 7, v{vL}"); E(f"v_xor_b32 v{vT0}, s{t0}, v{vT0}")
        E(f"v_lshlrev_b32 v{vT0}, 4, v{vT0}"); E(f"v_lshl_add_u32 v{vT0}, v{vL}, 7, v{vT0}"); E(f"v_add_u32 v{vT0}, {L_SB}, v{vT0}")
        E(f"v_xor_b32 v{vT1}, 16, v{vT0}")
        E(f"ds_write_b128 v{vT0}, {v(WRW,4)}", tag="w"); E(f"ds_write_b128 v{vT1}, {v(WRW+4,4)}", tag="w")
        E(f"v_lshrrev_b32 v{vT2}, 3, v0"); E(f"v_xor_b32 v{vT3}, v{vT2}, v0"); E(f"v_and_b32 v{vT3}, 7, v{vT3}")
        E(f"v_lshlrev_b32 v{vT3}, 4, v{vT3}"); E(f"v_lshl_add_u32 v{vT3}, v{vT2}, 7, v{vT3}"); E(f"v_add_u32 v{vT3}, {L_SB}, v{vT3}")
        self.checked([f1load], [FP], "f1p", ref=sTOK)
        E.wait(lg="w")
        E("s_barrier")
        E(f"ds_read_b128 {v(WRW+8,4)}, v{vT3}", tag="w0"); E(f"ds_read_b128 {v(WRW+12,4)}, v{vT3} offset:4096", tag="w1r")
        wt_soff(t1, t2)
        E(f"s_add_u32 s{t2}, s{t1}, {32*8192}")
        E.wait(lg="w0")
        E(f"buffer_store_dwordx4 {v(WRW+8,4)}, v{vA3}, {s(SWS,4)}, s{t1} offen sc1", tag="wts")
        E.wait(lg="w1r")
        E(f"buffer_store_dwordx4 {v(WRW+12,4)}, v{vA3}, {s(SWS,4)}, s{t2} offen sc1", tag="wts")
        E(f"v_mov_b32 v{vT0}, {hex(OOB)}"); E(f"v_mov_b32 v{vT1}, {hex(EP)}")
        E(f"s_cmp_eq_u32 s2, 0"); E(f"s_cselect_b32 s{t0}, 0, 1")
        E(f"v_cmp_eq_u32 vcc, s{t0}, v0"); E(f"s_cselect_b64 vcc, vcc, 0")
        E(f"v_cndmask_b32 v{vT0}, v{vT0}, v{vT1}, vcc"); E(f"v_mov_b32 v{vT1}, s{t5}")
        E(f"buffer_store_dword v{vT1}, v{vT0}, {s(SWS,4)}, 0 offen", tag="eps")
        E(f"v_lshrrev_b32 v{vT0}, 3, v0"); E(f"v_lshlrev_b32 v{vA3}, 9, v{vT0}")
        E(f"v_and_b32 v{vT0}, 7, v0"); E(f"v_lshl_add_u32 v{vA3}, v{vT0}, 4, v{vA3}")
        def ln2_soff(d, tmp):
            E(f"s_lshl_b32 s{d}, s{sG}, 17"); E(f"s_lshr_b32 s{tmp}, s{sMU}, 2"); E(f"s_lshl_b32 s{tmp}, s{tmp}, 15")
            E(f"s_add_u32 s{d}, s{d}, s{tmp}"); E(f"s_and_b32 s{tmp}, s{sMU}, 3"); E(f"s_lshl_b32 s{tmp}, s{tmp}, 7")
            E(f"s_add_u32 s{d}, s{d}, s{tmp}"); E(f"s_add_u32 s{d}, s{d}, {LN2}")
        ln2_soff(t1, t2)
        E(f"s_add_u32 s{t2}, s{t1}, 16384")
        E(f"buffer_store_dwordx4 {v(CL,4)}, v{vA3}, {s(SWS,4)}, s{t1} offen sc1", tag="clr2")
        E(f"buffer_store_dwordx4 {v(CL,4)}, v{vA3}, {s(SWS,4)}, s{t2} offen sc1", tag="clr2")
        if self.stop == "A":
            return self.finish()
        self.w1_dma(range(0, 32))
        F64, TF, TI, WF, DZ, A1, A2 = 80, 144, 160, 176, 192, 224, 240
        E(f"s_mov_b32 s{t4}, {lit(2.0**-11)}"); E(f"s_mov_b32 s{t5}, {lit(2.0**-11)}")
        E(f"s_mov_b32 s{t2}, {lit(2.0**-10)}"); E(f"s_mov_b32 s{t3}, {lit(2.0**-10)}")
        self.const_f64(F64)
        self.const_twb(TF, TI)
        E(f"s_lshl_b32 s{t0}, s{sW}, 19"); E(f"s_lshl_b32 s{t1}, s{sP}, 5"); E(f"s_add_u32 s{t0}, s{t0}, s{t1}")
        E(f"s_add_u32 s{t1}, s{t0}, {32*8192}")
        E(f"s_lshl_b32 s{t2}, s{sP}, 13"); E(f"s_lshl_b32 s{t3}, s{sW}, 11"); E(f"s_add_u32 s{t2}, s{t2}, s{t3}")
        E(f"s_add_u32 s{t2}, s{t2}, {WT}")
        RW = A2
        E.wait(vm="x1s")
        lds = [f"buffer_load_dwordx4 {v(DZ,4)}, v{vGA}, {s(SWS,4)}, s{t0} offen sc1",
               f"buffer_load_dwordx4 {v(DZ+4,4)}, v{vGA}, {s(SWS,4)}, s{t1} offen sc1",
               f"buffer_load_dwordx4 {v(RW,4)}, v{vL16}, {s(SWS,4)}, s{t2} offen sc1",
               f"buffer_load_dwordx4 {v(RW+4,4)}, v{vL16}, {s(SWS,4)}, s{t2} offen offset:1024 sc1"]
        for l in lds: E(l, tag="x1p")
        E(f"v_lshrrev_b32 v{vT0}, 5, v{vL}"); E(f"v_lshlrev_b32 v{vT0}, 12, v{vT0}")
        E(f"v_and_b32 v{vT1}, 31, v{vL}"); E(f"v_lshl_add_u32 v{vT0}, v{vT1}, 4, v{vT0}")
        E(f"s_lshl_b32 s{t3}, s{sW}, 10"); E(f"s_add_u32 s{t4}, s{t3}, {L_SA}"); E(f"v_add_u32 v{vA0}, s{t4}, v{vT0}")
        E(f"v_add_u32 v{vA1}, {L_SA}, v{vL16}")
        E(f"v_add_u32 v{vT3}, {L_SB}, v{vL16}"); E(f"v_add_u32 v{vT2}, s{t3}, v{vT3}")
        self.checked(lds, list(range(DZ, DZ+8)) + list(range(RW, RW+8)), "x1p")
        self.stamp("X1")
        E(f"ds_write_b128 v{vA0}, {v(DZ,4)}", tag="b"); E(f"ds_write_b128 v{vA0}, {v(DZ+4,4)} offset:512", tag="b")
        for T in range(2):
            for i in range(4):
                E(f"v_lshlrev_b32 v{WF+4*T+i}, 16, v{RW+2*i+T}")
                E(f"v_and_b32 v{WF+8+4*T+i}, s{sMASK}, v{RW+2*i+T}")
        E.wait(lg="b")
        E("s_barrier")
        for j in range(4):
            for wh in range(2):
                E(f"ds_read_b128 {v(DZ+16*wh+4*j,4)}, v{vA1} offset:{4096*wh+1024*j}", tag=f"b{j}")
        for j in range(4):
            E.wait(lg=f"b{j}")
            self.mm16(A1+0, DZ+4*j, F64+16*j+0, j == 0)
            self.mm16(A1+4, DZ+4*j, F64+16*j+4, j == 0)
            self.mm16(A1+8, DZ+16+4*j, F64+16*j+8, j == 0)
            self.mm16(A1+12, DZ+16+4*j, F64+16*j+12, j == 0)
        Er, Ei, Or, Oi, TM = DZ, DZ+4, DZ+8, DZ+12, DZ+16
        ng = " neg_lo:[0,1] neg_hi:[0,1]"
        for h in (0, 2):
            E(f"v_pk_add_f32 {v(Er+h,2)}, {v(A1+h,2)}, {v(A1+8+h,2)}")
            E(f"v_pk_add_f32 {v(Ei+h,2)}, {v(A1+4+h,2)}, {v(A1+12+h,2)}" + ng)
            E(f"v_pk_add_f32 {v(Or+h,2)}, {v(A1+4+h,2)}, {v(A1+12+h,2)}")
            E(f"v_pk_add_f32 {v(Oi+h,2)}, {v(A1+8+h,2)}, {v(A1+h,2)}" + ng)
        for h in (0, 2):
            self.cmul_pk(A1+h, A1+4+h, Er+h, Ei+h, TF+h, TF+4+h, TM, False)
            self.cmul_pk(A1+8+h, A1+12+h, Or+h, Oi+h, TF+8+h, TF+12+h, TM+4, False)
        OP = DZ+24
        for r in range(8):
            E(f"v_cvt_pk_bf16_f32 v{OP+r}, v{A1+2*r}, v{A1+2*r+1}")
        for p in range(2):
            for T in range(2):
                self.mm16(A2+8*T, self.f32w(T, p, "fr"), OP+4*p, p == 0)
                self.mm16(A2+8*T+4, self.f32w(T, p, "fi"), OP+4*p, p == 0)
        for T in range(2):
            for h in (0, 2):
                self.cmul_pk(A1+8*T+h, A1+8*T+4+h, A2+8*T+h, A2+8*T+4+h, WF+4*T+h, WF+8+4*T+h, TM+4*T, True)
        for r in range(8):
            E(f"v_cvt_pk_bf16_f32 v{OP+r}, v{A1+2*r}, v{A1+2*r+1}")
        for T in range(2):
            for Uu in range(2):
                self.mm16(A2+8*Uu, OP+4*T, self.f32w(Uu, T, "ir"), T == 0)
                self.mm16(A2+8*Uu+4, OP+4*T, self.f32w(Uu, T, "ii"), T == 0)
        for Uu in range(2):
            for h in (0, 2):
                self.cmul_pk(A1+8*Uu+h, A1+8*Uu+4+h, A2+8*Uu+h, A2+8*Uu+4+h, TI+8*Uu+h, TI+8*Uu+4+h, TM+4*Uu, True)
        Pr, Pi, Qr, Qi = DZ, DZ+4, DZ+8, DZ+12
        for h in (0, 2):
            E(f"v_pk_add_f32 {v(Pr+h,2)}, {v(A1+h,2)}, {v(A1+12+h,2)}" + ng)
            E(f"v_pk_add_f32 {v(Pi+h,2)}, {v(A1+4+h,2)}, {v(A1+8+h,2)}")
            E(f"v_pk_add_f32 {v(Qr+h,2)}, {v(A1+h,2)}, {v(A1+12+h,2)}")
            E(f"v_pk_add_f32 {v(Qi+h,2)}, {v(A1+8+h,2)}, {v(A1+4+h,2)}" + ng)
        for i in range(4):
            E(f"v_cvt_pk_bf16_f32 v{OP+i}, v{Pr+i}, v{Pi+i}")
        E(f"ds_write_b128 v{vT2}, {v(OP,4)}", tag="b")
        for i in range(4):
            E(f"v_cvt_pk_bf16_f32 v{OP+4+i}, v{Qr+i}, v{Qi+i}")
        E(f"ds_write_b128 v{vT2}, {v(OP+4,4)} offset:4096", tag="b")
        E.wait(lg="b")
        E("s_barrier")
        for j in range(4):
            for wh in range(2):
                E(f"ds_read_b128 {v(DZ+16*wh+4*j,4)}, v{vT3} offset:{4096*wh+1024*j}", tag=f"b{j}")
        for j in range(4):
            E.wait(lg=f"b{j}")
            self.mm16(A1+0, F64+16*j+8, DZ+4*j, j == 0)
            self.mm16(A1+4, F64+16*j+12, DZ+4*j, j == 0)
            self.mm16(A1+8, F64+16*j+0, DZ+16+4*j, j == 0)
            self.mm16(A1+12, F64+16*j+4, DZ+16+4*j, j == 0)
        E(f"s_lshl_b32 s{t0}, s{sP}, 13"); E(f"s_lshl_b32 s{t1}, s{sW}, 11"); E(f"s_add_u32 s{t0}, s{t0}, s{t1}")
        E(f"s_add_u32 s{t0}, s{t0}, {X2}")
        E("s_nop 7")
        ls = E.newlabel("L_nonyq")
        E(f"s_cmp_lg_u32 s{sP}, 255"); E(f"s_cbranch_scc1 {ls}")
        for r in range(8):
            E(f"v_add_f32 v{A1+r}, v{A1+r}, v{A1+8+r}"); E(f"v_mul_f32 v{A1+r}, 0.5, v{A1+r}"); E(f"v_mov_b32 v{A1+8+r}, 0")
        E.label(ls)
        for i in range(4):
            E(f"v_cvt_pk_bf16_f32 v{DZ+i}, v{A1+i}, v{A1+4+i}")
            E(f"v_cvt_pk_bf16_f32 v{DZ+4+i}, v{A1+8+i}, v{A1+12+i}")
        for i in range(4):
            E(f"v_permlane32_swap_b32 v{DZ+i}, v{DZ+4+i}")
        E.wait(vm="clr2")
        E(f"buffer_store_dwordx4 {v(DZ,4)}, v{vA2}, {s(SWS,4)}, s{t0} offen sc1", tag="x2s")
        E(f"buffer_store_dwordx4 {v(DZ+4,4)}, v{vA2}, {s(SWS,4)}, s{t0} offen offset:1024 sc1", tag="x2s")
        self.stamp("B_st")
        if self.stop == "B":
            return self.finish()
        vW2 = vA5 + 0
        E(f"v_lshrrev_b32 v{vT0}, 5, v{vL}"); E(f"v_lshlrev_b32 v{vA2}, 9, v{vT0}")
        E(f"v_bfe_u32 v{vT0}, v{vL}, 2, 2"); E(f"v_lshl_add_u32 v{vA2}, v{vT0}, 6, v{vA2}")
        E(f"v_bfe_u32 v{vT0}, v{vL}, 4, 1"); E(f"v_lshl_add_u32 v{vA2}, v{vT0}, 5, v{vA2}")
        E(f"v_and_b32 v{vT0}, 3, v{vL}"); E(f"v_lshl_add_u32 v{vA2}, v{vT0}, 3, v{vA2}")
        E(f"v_add_u32 v{vA2}, s100, v{vA2}")
        for b in range(0, 4):
            self.w2_dma(b); self.w2_read(b, vA2)
        F16C, XF, DC, AC, Y, OP, TM = 80, 88, 104, 112, 128, 144, 152
        self.const_f16(F16C, True)
        for r in range(2):
            for T in range(2):
                for h in range(2):
                    E(f"v_lshlrev_b32 v{XF+8*r+4*T+2*h}, 16, v{XC+4*r+2*T+h}")
                    E(f"v_and_b32 v{XF+8*r+4*T+2*h+1}, s{sMASK}, v{XC+4*r+2*T+h}")
        for h, dst in ((0, vA0), (1, vA1)):
            E(f"s_lshl_b32 s{t0}, s{sW}, 5"); E(f"s_add_u32 s{t0}, s{t0}, {128*h}")
            E(f"v_and_b32 v{vT0}, 31, v{vL}"); E(f"v_add_u32 v{vT0}, s{t0}, v{vT0}")
            E(f"v_sub_u32 v{vT1}, 511, v{vT0}")
            E(f"v_cmp_eq_u32 vcc, 255, v{vT0}"); E(f"v_cndmask_b32 v{vT1}, v{vT1}, 0, vcc")
            E(f"v_add_u32 v{vT0}, 1, v{vT0}")
            E(f"v_cmp_le_u32 vcc, 32, v{vL}"); E(f"v_cndmask_b32 v{vT0}, v{vT0}, v{vT1}, vcc")
            E(f"v_and_b32 v{vT1}, 1, v{vT0}"); E(f"v_lshlrev_b32 v{dst}, 10, v{vT1}")
            E(f"v_lshrrev_b32 v{vT1}, 7, v{vT0}"); E(f"v_lshl_add_u32 v{dst}, v{vT1}, 8, v{dst}")
            E(f"v_bfe_u32 v{vT1}, v{vT0}, 1, 4"); E(f"v_lshl_add_u32 v{dst}, v{vT1}, 4, v{dst}")
            E(f"v_bfe_u32 v{vT1}, v{vT0}, 5, 2"); E(f"v_lshl_add_u32 v{dst}, v{vT1}, 2, v{dst}")
            E(f"v_add_u32 v{dst}, {L_SA}, v{dst}")
        E(f"s_lshl_b32 s{t0}, s{sW}, 11"); E(f"s_add_u32 s{t0}, s{t0}, {L_SA}"); E(f"v_add_u32 v{vT2}, s{t0}, v{vL16}")
        E(f"s_lshl_b32 s{t0}, s{sW}, 18"); E(f"s_lshl_b32 s{t1}, s{sG}, 9"); E(f"s_add_u32 s{t0}, s{t0}, s{t1}")
        E(f"s_lshl_b32 s{t1}, s{sMU}, 5"); E(f"s_add_u32 s{t0}, s{t0}, s{t1}"); E(f"s_add_u32 s{t0}, s{t0}, {X2}")
        E(f"s_add_u32 s{t1}, s{t0}, {128*8192}")
        E.wait(vm="x2s")
        lds = [f"buffer_load_dwordx4 {v(DC,4)}, v{vGA}, {s(SWS,4)}, s{t0} offen sc1",
               f"buffer_load_dwordx4 {v(DC+4,4)}, v{vGA}, {s(SWS,4)}, s{t1} offen sc1"]
        for l in lds: E(l, tag="x2p")
        self.checked(lds, list(range(DC, DC+8)), "x2p")
        self.stamp("X2")
        for h, ad in ((0, vA0), (1, vA1)):
            for rho in range(4):
                E(f"ds_write_b32 v{ad}, v{DC+4*h+rho} offset:{2048*rho}", tag="c")
        E.wait(lg="c")
        E("s_barrier")
        E(f"ds_read_b128 {v(DC,4)}, v{vT2}", tag="c0"); E(f"ds_read_b128 {v(DC+4,4)}, v{vT2} offset:1024", tag="c1")
        for p in range(2):
            E.wait(lg=f"c{p}")
            self.mm16(AC+4*p, DC+4*p, F16C, True)
            self.mm16(AC+8+4*p, DC+4*p, F16C+4, True)
        for p in range(2):
            for h in (0, 2):
                self.cmul_pk(Y+4*p+h, Y+8+4*p+h, AC+4*p+h, AC+8+4*p+h, TWA+4*p+h, TWA+8+4*p+h, TM, True)
        for p in range(2):
            for part in range(2):
                for h in range(2):
                    E(f"v_cvt_pk_bf16_f32 v{OP+4*p+2*part+h}, v{Y+8*part+4*p+2*h}, v{Y+8*part+4*p+2*h+1}")
        for p in range(2):
            for T in range(2):
                self.mm16(AC+4*T, OP+4*p, self.f32w(T, p, "ir"), p == 0)
                self.mm16(AC+8+4*T, OP+4*p, self.f32w(T, p, "ii"), p == 0)
        E(f"v_lshlrev_b32 v{vT0}, 2, v{vN}"); E(f"v_add_u32 v{vT0}, v{vT0}, v{vQ}"); E(f"v_lshlrev_b32 v{vT0}, 7, v{vT0}")
        E(f"s_lshl_b32 s{t0}, s{sW}, 1"); E(f"v_and_b32 v{vT1}, 7, v{vN}"); E(f"v_xor_b32 v{vT1}, s{t0}, v{vT1}")
        E(f"v_lshl_add_u32 v{vA0}, v{vT1}, 4, v{vT0}"); E(f"v_add_u32 v{vA0}, {L_SB}, v{vA0}"); E(f"v_xor_b32 v{vA1}, 16, v{vA0}")
        E(f"v_lshrrev_b32 v{vT0}, 5, v0"); E(f"v_xor_b32 v{vT0}, v{vT0}, v0"); E(f"v_and_b32 v{vT0}, 7, v{vT0}")
        E(f"v_lshrrev_b32 v{vT1}, 3, v0"); E(f"v_lshlrev_b32 v{vT1}, 7, v{vT1}"); E(f"v_lshl_add_u32 v{vT3}, v{vT0}, 4, v{vT1}")
        E(f"v_add_u32 v{vT3}, {L_SB}, v{vT3}")
        H = AC
        for r in range(0, 16, 2):
            E(f"v_pk_add_f32 {v(H+r,2)}, {v(H+r,2)}, {v(XF+r,2)}")
        sa, qa, sb, qb, RR = Y, Y+1, Y+2, Y+3, Y+12
        for r, (S_, Q_) in enumerate(((sa, qa), (sb, qb))):
            b = H+8*r; u = Y+4+4*r
            E(f"v_pk_add_f32 {v(u,2)}, {v(b,2)}, {v(b+2,2)}"); E(f"v_pk_mul_f32 {v(u+2,2)}, {v(b,2)}, {v(b,2)}")
            E(f"v_pk_add_f32 {v(u,2)}, {v(u,2)}, {v(b+4,2)}"); E(f"v_pk_fma_f32 {v(u+2,2)}, {v(b+2,2)}, {v(b+2,2)}, {v(u+2,2)}")
            E(f"v_pk_add_f32 {v(u,2)}, {v(u,2)}, {v(b+6,2)}"); E(f"v_pk_fma_f32 {v(u+2,2)}, {v(b+4,2)}, {v(b+4,2)}, {v(u+2,2)}")
            E(f"v_add_f32 v{S_}, v{u}, v{u+1}"); E(f"v_pk_fma_f32 {v(u+2,2)}, {v(b+6,2)}, {v(b+6,2)}, {v(u+2,2)}")
            E(f"v_add_f32 v{Q_}, v{u+2}, v{u+3}")
        HBF = DC
        fill = [f"v_cvt_pk_bf16_f32 v{HBF+r}, v{H+2*r}, v{H+2*r+1}" for r in range(8)]
        self.ln_reduce(sa, qa, sb, qb, RR, fill)
        for r in range(2):
            for h in range(0, 8, 2):
                E(f"v_pk_fma_f32 {v(H+8*r+h,2)}, {v(H+8*r+h,2)}, {v(RR+2*r,2)}, {v(RR+2*r,2)} op_sel:[0,0,1] op_sel_hi:[1,0,1]")
            for h in range(4):
                E(f"v_cvt_pk_bf16_f32 v{OP+4*r+h}, v{H+8*r+2*h}, v{H+8*r+2*h+1}")
            E(f"ds_write_b128 v{vA0 if r == 0 else vA1}, {v(OP+4*r,4)}", tag="c")
        E.wait(lg="c")
        E("s_barrier")
        E(f"ds_read_b128 {v(Y,4)}, v{vT3}", tag="c0"); E(f"ds_read_b128 {v(Y+4,4)}, v{vT3} offset:4096", tag="c1")
        ln2_soff(t1, t2)
        E(f"s_add_u32 s{t2}, s{t1}, 16384")
        for r in range(2):
            E(f"v_permlane16_swap_b32 v{HBF+4*r}, v{HBF+4*r+2}"); E(f"v_permlane16_swap_b32 v{HBF+4*r+1}, v{HBF+4*r+3}")
        E.wait(lg="c0")
        E(f"buffer_store_dwordx4 {v(Y,4)}, v{vA3}, {s(SWS,4)}, s{t1} offen sc1", tag="lns")
        E.wait(lg="c1")
        E(f"buffer_store_dwordx4 {v(Y+4,4)}, v{vA3}, {s(SWS,4)}, s{t2} offen sc1", tag="lns")
        E(f"v_lshlrev_b32 v{vT0}, 6, v{vN}"); E(f"v_and_b32 v{vT1}, 1, v{vQ}"); E(f"v_lshl_add_u32 v{vT0}, v{vT1}, 5, v{vT0}")
        E(f"v_lshrrev_b32 v{vT1}, 1, v{vQ}"); E(f"v_lshl_add_u32 v{vT0}, v{vT1}, 4, v{vT0}")
        E(f"s_add_u32 s{t0}, s{t6}, {HR}")
        E(f"buffer_store_dwordx4 {v(HBF,4)}, v{vT0}, {s(SWS,4)}, s{t0} offen sc1", tag="hrs")
        E(f"buffer_store_dwordx4 {v(HBF+4,4)}, v{vT0}, {s(SWS,4)}, s{t0} offen offset:1024 sc1", tag="hrs")
        self.stamp("C_st")
        if self.stop == "C":
            return self.finish()
        ACC, LN, WFR, GT = 64, 128, 16, 40
        B1R = 16
        E(f"v_lshrrev_b32 v{vT0}, 5, v{vL}"); E(f"v_lshlrev_b32 v{vT0}, 3, v{vT0}")
        E(f"s_mul_i32 s{t0}, s{sMU}, 224")
        for g4 in range(14):
            E(f"buffer_load_dwordx2 {v(B1R+2*g4,2)}, v{vT0}, {s(SB1,4)}, s{t0} offen offset:{16*g4}", tag="b1")
        for b in range(4, 7):
            self.w2_dma(b); self.w2_read(b, vA2)
        E.wait(vm="b1")
        for g4 in range(14):
            for h in range(2):
                E(f"v_lshlrev_b32 v{ACC+4*g4+2*h}, 16, v{B1R+2*g4+h}")
                E(f"v_and_b32 v{ACC+4*g4+2*h+1}, s{sMASK}, v{B1R+2*g4+h}")
        for r in range(56, 64): E(f"v_mov_b32 v{ACC+r}, 0")
        E(f"v_lshrrev_b32 v{vT0}, 5, v{vL}"); E(f"v_mul_u32_u24 v{vT0}, 1792, v{vT0}")
        E(f"v_and_b32 v{vT1}, 3, v{vL}"); E(f"v_lshl_add_u32 v{vT0}, v{vT1}, 3, v{vT0}")
        E(f"v_bfe_u32 v{vT1}, v{vL}, 2, 2"); E(f"v_lshl_add_u32 v{vT2}, v{vT1}, 5, v{vT0}")
        E(f"v_lshl_add_u32 v{vA0}, v{vT1}, 6, v{vT0}")
        E(f"v_bfe_u32 v{vT1}, v{vL}, 4, 1"); E(f"v_lshl_add_u32 v{vA0}, v{vT1}, 5, v{vA0}")
        E(f"v_add_u32 v{vA1}, 57344, v{vA0}"); E(f"v_add_u32 v{vT3}, 57344, v{vT2}")
        E(f"s_lshl_b32 s{t0}, s{sG}, 17"); E(f"s_lshl_b32 s{t1}, s{sW}, 15"); E(f"s_add_u32 s{t0}, s{t0}, s{t1}")
        E(f"s_add_u32 s{t0}, s{t0}, {LN2}")
        for b in range(8): E(f"s_add_u32 s{40+b}, s{t0}, {4096*b}")
        E.wait(vm=["w1", "lns"])
        E("s_barrier")
        lnl = [[f"buffer_load_dwordx4 {v(LN+16*b+4*x,4)}, v{vL16}, {s(SWS,4)}, s{40+b} offen offset:{1024*x} sc1" for x in range(4)] for b in range(8)]
        for b in range(8):
            for l in lnl[b]: E(l, tag=f"ln{b}")
        def w1rd(ks, Uu, dst, tag):
            ad = (vA0, vA1)[ks >= 16] if Uu < 3 else (vT2, vT3)[ks >= 16]
            for e2 in range(2):
                E(f"ds_read_b64_tr_b16 {v(dst+2*e2,2)}, v{ad} offset:{(ks%16)*3584+e2*896+Uu*256}", tag=tag)
        def mm32(d, x, y, first=False):
            E(f"v_mfma_f32_32x32x16_bf16 {v(d,16)}, {x}, {y}, {'0' if first else v(d,16)}")
        for grp, tiles in enumerate(((0, 1, 2), (3,))):
            for ti, Uu in enumerate(tiles): w1rd(0, Uu, WFR+4*ti, "k0")
            for ks in range(32):
                if grp == 0 and ks % 4 == 0:
                    b = ks//4
                    self.checked(lnl[b], list(range(LN+16*b, LN+16*b+16)), f"ln{b}", tmp=GT)
                    if b == 0: self.stamp("LN")
                if ks < 31:
                    for ti, Uu in enumerate(tiles): w1rd(ks+1, Uu, WFR+12*((ks+1) & 1)+4*ti, f"k{ks+1}")
                E.wait(lg=f"k{ks}")
                for ti, Uu in enumerate(tiles):
                    mm32(ACC+16*Uu, v(WFR+12*(ks & 1)+4*ti, 4), v(LN+4*ks, 4))
        self.stamp("G1mm")
        E(f"s_lshl_b32 s{t0}, s{sG}, 2"); E(f"s_add_u32 s{t0}, s{t0}, s{sW}"); E(f"s_lshl_b32 s{t0}, s{t0}, 4")
        E(f"s_add_u32 s{t0}, s{t0}, s{sMU}"); E(f"s_mul_i32 s{t0}, s{t0}, 7168"); E(f"s_add_u32 s{t0}, s{t0}, {HB}")
        E(f"s_add_u32 s{t1}, s{t0}, 4096")
        k2 = -2.0*math.sqrt(2.0/math.pi)*math.log2(math.e); k1 = k2*0.044715
        E(f"s_mov_b32 s{t2}, {lit(k1)}"); E(f"s_mov_b32 s{t3}, {lit(k1)}")
        E(f"v_mov_b32 v{GT+16}, {lit(k2)}"); E(f"v_mov_b32 v{GT+17}, {lit(k2)}")
        for u in range(7):
            b = ACC+8*u
            for h in range(0, 8, 2):
                E(f"v_pk_mul_f32 {v(GT+h,2)}, {v(b+h,2)}, {v(b+h,2)}")
            for h in range(0, 8, 2):
                E(f"v_pk_fma_f32 {v(GT+h,2)}, {v(GT+h,2)}, s[{t2}:{t2+1}], {v(GT+16,2)}")
            for h in range(0, 8, 2):
                E(f"v_pk_mul_f32 {v(GT+h,2)}, {v(GT+h,2)}, {v(b+h,2)}")
            for h in range(8): E(f"v_exp_f32 v{GT+h}, v{GT+h}")
            for h in range(0, 8, 2):
                E(f"v_pk_add_f32 {v(GT+h,2)}, {v(GT+h,2)}, 1.0 op_sel_hi:[1,0]")
            for h in range(8): E(f"v_rcp_f32 v{GT+h}, v{GT+h}")
            for h in range(0, 8, 2):
                E(f"v_pk_mul_f32 {v(GT+h,2)}, {v(GT+h,2)}, {v(b+h,2)}")
            o_ = GT+8+4*(u & 1)
            for h in range(4): E(f"v_cvt_pk_bf16_f32 v{o_+h}, v{GT+2*h}, v{GT+2*h+1}")
            E(f"buffer_store_dwordx4 {v(o_,4)}, v{vL16}, {s(SWS,4)}, s{t0 if u < 4 else t1} offen offset:{1024*(u%4)} sc1", tag="hs")
        self.stamp("G1_st")
        E(f"s_lshl_b32 s{t0}, s{sP}, 2"); E(f"s_add_u32 s{t0}, s{t0}, s{sW}"); E(f"s_lshl_b32 s{t0}, s{t0}, 6")
        E(f"s_add_u32 s{t0}, s{t0}, {F2}")
        E(f"v_mov_b32 v{vT0}, {hex(OOB)}"); E(f"v_mov_b32 v{vT1}, s{t0}")
        E(f"v_cmp_eq_u32 vcc, 0, v{vL}"); E(f"v_cndmask_b32 v{vT0}, v{vT0}, v{vT1}, vcc")
        E(f"v_mov_b32 v{vT1}, s{sTOK}")
        E.wait(vm=["hs", "hrs"])
        E(f"buffer_store_dword v{vT1}, v{vT0}, {s(SWS,4)}, 0 offen sc1", tag="f2s")
        if self.stop == "G1":
            return self.finish()
        E(f"s_lshl_b32 s{t0}, s{sG}, 12"); E(f"s_add_u32 s{t0}, s{t0}, {F2}")
        E(f"v_lshlrev_b32 v{vA0}, 6, v{vL}")
        f2load = f"buffer_load_dword v{GT}, v{vA0}, {s(SWS,4)}, s{t0} offen sc1"
        E(f"v_lshrrev_b32 v{vT0}, 4, v{vL}"); E(f"v_lshlrev_b32 v{vA1}, 15, v{vT0}")
        E(f"v_bfe_u32 v{vT0}, v{vL}, 3, 1"); E(f"v_lshl_add_u32 v{vA1}, v{vT0}, 10, v{vA1}")
        E(f"v_and_b32 v{vT0}, 7, v{vL}"); E(f"v_lshlrev_b32 v{vT1}, 4, v{vT0}"); E(f"v_add_u32 v{vA1}, v{vA1}, v{vT1}")
        E(f"s_lshl_b32 s46, s{sG}, 7"); E(f"s_lshr_b32 s{t1}, s{sMU}, 3"); E(f"s_lshl_b32 s{t1}, s{t1}, 4"); E(f"s_add_u32 s46, s46, s{t1}")
        E(f"s_lshl_b32 s{t1}, s{sW}, 1"); E(f"s_add_u32 s46, s46, s{t1}"); E(f"s_lshl_b32 s46, s46, 10")
        E(f"s_and_b32 s{t1}, s{sMU}, 7"); E(f"s_lshl_b32 s47, s{t1}, 7"); E(f"s_add_u32 s46, s46, s47")
        E(f"s_add_u32 s48, s46, {8*1024}"); E(f"s_add_u32 s49, s46, {HR}"); E(f"s_add_u32 s50, s48, {HR}")
        E(f"s_lshl_b32 s{t1}, s{sG}, 2"); E(f"s_lshr_b32 s{t2}, s{sMU}, 3"); E(f"s_lshl_b32 s{t2}, s{t2}, 1"); E(f"s_add_u32 s{t1}, s{t1}, s{t2}")
        E(f"s_lshl_b32 s{t1}, s{t1}, 4"); E(f"s_lshl_b32 s{t2}, s{sW}, 2"); E(f"s_add_u32 s{t1}, s{t1}, s{t2}")
        E(f"s_mul_i32 s{t1}, s{t1}, 7168"); E(f"s_add_u32 s52, s{t1}, {HB}"); E(f"s_add_u32 s53, s52, {16*7168}")
        E(f2load, tag="f2p")
        self.checked([f2load], [GT], "f2p", ref=sTOK)
        self.stamp("F2")
        HF = 128; EPI = 16
        def hload(li):
            tau, ks = divmod(li, 28)
            E(f"s_add_u32 s{t2}, s{52+tau}, {(ks//4)*4096}") if ks % 4 == 0 else None
            E(f"buffer_load_dwordx4 {v(HF+4*(li%32),4)}, v{vL16}, {s(SWS,4)}, s{t2} offen offset:{1024*(ks%4)} sc1", tag=f"h{li}")
        for li in range(32): hload(li)
        E(f"buffer_load_dwordx4 {v(EPI,4)}, v{vA1}, {s(SWS,4)}, s49 offen sc1", tag="epi")
        E(f"buffer_load_dwordx4 {v(EPI+4,4)}, v{vA1}, {s(SWS,4)}, s50 offen sc1", tag="epi")
        E(f"buffer_load_dwordx4 {v(EPI+8,4)}, v{vT1}, {s(SB2,4)}, s47 offen", tag="epi")
        E(f"v_and_b32 v{vT2}, 31, v{vL}"); E(f"v_lshrrev_b32 v{vT3}, 5, v{vL}"); E(f"v_xor_b32 v{vT3}, v{vT3}, v{vT2}")
        E(f"v_and_b32 v{vT3}, 7, v{vT3}"); E(f"v_lshlrev_b32 v{vT3}, 4, v{vT3}"); E(f"v_lshl_add_u32 v{vT2}, v{vT2}, 8, v{vT3}")
        E(f"s_lshl_b32 s{t3}, s{sW}, 13"); E(f"v_add_u32 v{vT2}, s{t3}, v{vT2}")
        WA = 28
        for x in range(4): E(f"v_xor_b32 v{WA+x}, {32*x}, v{vT2}")
        E(f"v_lshrrev_b32 v{vT2}, 3, v{vL}"); E(f"v_lshlrev_b32 v{vT3}, 1, v{vT0}"); E(f"v_xor_b32 v{vT3}, v{vT3}, v{vT2}")
        E(f"v_lshlrev_b32 v{vT3}, 4, v{vT3}"); E(f"v_lshl_add_u32 v{vT3}, v{vT2}, 8, v{vT3}")
        E(f"s_lshl_b32 s{t3}, s{sW}, 11"); E(f"v_add_u32 v{WA+4}, s{t3}, v{vT3}"); E(f"v_xor_b32 v{WA+5}, 16, v{WA+4}")
        for x in range(6): E(f"v_add_u32 v{WA+6+x}, {L_ST}, v{WA+x}")
        for li in range(56):
            tau, ks = divmod(li, 28)
            E.wait(vm=f"h{li}")
            for V in range(2):
                mm32(ACC+32*tau+16*V, a((ks*2+V)*4, 4), v(HF+4*(li % 32), 4), ks == 0)
            if li + 32 < 56: hload(li+32)
        self.stamp("G2mm")
        RD = 128
        for tau in range(2):
            wa = WA+6 if tau == 0 else WA
            for V in range(2):
                for a4 in range(4):
                    E(f"ds_write_b128 v{wa+a4}, {v(ACC+32*tau+16*V+4*a4,4)} offset:{128*V}", tag="r")
        E.wait(lg="r")
        E("s_barrier")
        E.wait(vm="epi")
        B2F = 40
        for r in range(4):
            E(f"v_lshlrev_b32 v{B2F+2*r}, 16, v{EPI+8+r}"); E(f"v_and_b32 v{B2F+2*r+1}, s{sMASK}, v{EPI+8+r}")
        for tau in range(2):
            ra = WA+10 if tau == 0 else WA+4
            for src in range(4):
                for x in range(2):
                    E(f"ds_read_b128 {v(RD+32*tau+8*src+4*x,4)}, v{ra+x} offset:{8192*src}", tag=f"r{tau}{src}")
        for tau in range(2):
            HX = 48
            for r in range(4):
                E(f"v_lshlrev_b32 v{HX+2*r}, 16, v{EPI+4*tau+r}"); E(f"v_and_b32 v{HX+2*r+1}, s{sMASK}, v{EPI+4*tau+r}")
            for h in range(0, 8, 2): E(f"v_pk_add_f32 {v(HX+h,2)}, {v(HX+h,2)}, {v(B2F+h,2)}")
            for src in range(4):
                E.wait(lg=f"r{tau}{src}")
                for h in range(0, 8, 2): E(f"v_pk_add_f32 {v(HX+h,2)}, {v(HX+h,2)}, {v(RD+32*tau+8*src+h,2)}")
            for r in range(4): E(f"v_cvt_pk_bf16_f32 v{56+4*tau+r}, v{HX+2*r}, v{HX+2*r+1}")
            E(f"buffer_store_dwordx4 {v(56+4*tau,4)}, v{vA1}, {s(SOUT,4)}, s{46 if tau == 0 else 48} offen", tag="out")
        return self.finish()
    def finish(self):
        E = self.E
        if self.prof:
            E.wait(vm="all")
            self.stamp("end")
            E(f"v_mov_b32 v{vT0}, 0")
            for i in range(self.nstamp): E(f"v_writelane_b32 v{vT0}, s{84+i}, {i}")
            E(f"s_lshl_b32 s{t0}, s2, 2"); E(f"s_add_u32 s{t0}, s{t0}, s{sW}"); E(f"s_lshl_b32 s{t0}, s{t0}, 8")
            E(f"s_add_u32 s{t0}, s{t0}, {PROF}")
            E(f"v_lshlrev_b32 v{vT1}, 2, v{vL}")
            E(f"buffer_store_dword v{vT0}, v{vT1}, {s(SWS,4)}, s{t0} offen")
            if self.o.get("dbg") is not None:
                self.srd(SX, KA+18, 256)
                E(f"v_subrev_u32 v{vT0}, s84, v{vT0}")
                E(f"v_lshlrev_b32 v{vT1}, 2, v0")
                E(f"v_mov_b32 v{vT2}, {hex(OOB)}")
                E(f"v_cmp_gt_u32 vcc, 16, v0")
                E(f"s_cmp_eq_u32 s2, {self.o['dbg']}")
                E(f"s_cselect_b64 vcc, vcc, 0")
                E(f"v_cndmask_b32 v{vT1}, v{vT2}, v{vT1}, vcc")
                E(f"buffer_store_dword v{vT0}, v{vT1}, {s(SX,4)}, 0 offen")
        E.wait(vm="all", lg="all")
        E.label("L_end")
        E("s_endpgm")
        hdr = f"; @launch grid=(256,1,1) block=(256,1,1) lds={L_END}\n"
        hdr += '.amdgcn_target "amdgcn-amd-amdhsa--gfx950"\n.text\n'
        hdr += f".globl {KNAME}\n.p2align 8\n.type {KNAME},@function\n{KNAME}:\n"
        desc = f""".section .rodata,"a"
.p2align 6
.amdhsa_kernel {KNAME}
  .amdhsa_next_free_vgpr 512
  .amdhsa_next_free_sgpr 102
  .amdhsa_accum_offset 256
  .amdhsa_group_segment_fixed_size 0
  .amdhsa_kernarg_size 88
  .amdhsa_user_sgpr_count 2
  .amdhsa_user_sgpr_kernarg_segment_ptr 1
  .amdhsa_system_sgpr_workgroup_id_x 1
  .amdhsa_float_denorm_mode_32 3
.end_amdhsa_kernel
"""
        return hdr + E.text() + desc

if __name__ == "__main__":
    import argparse
    ap = argparse.ArgumentParser()
    ap.add_argument("-o", default="sequential_preLN__spectral_gfnet__mixer_channel_mlp__prompt.s")
    ap.add_argument("--prof", action="store_true")
    ap.add_argument("--stop", default=None)
    ap.add_argument("--opt", action="append", default=[])
    args = ap.parse_args()
    opts = {}
    for x in args.opt:
        kk, vv = x.split("=")
        opts[kk] = int(vv) if vv.lstrip("-").isdigit() else vv
    k = K(prof=args.prof, stop=args.stop, opts=opts)
    txt = k.build()
    open(args.o, "w").write(txt)
    if args.prof: open(args.o + ".names", "w").write(" ".join(k.names))
    print("wrote", args.o, len(txt), "bytes; nops inserted:", k.E.nnop)
```

```python
import sys, math
from emit import Emit, v, a, s
KNAME = "sequential_preLN__spectral_gfnet__mixer_channel_mlp__prompt_kernel"
MB = 1 << 20
X1, X2, WT, LN2, HR, HB = 0, 2*MB, 4*MB, 6*MB, 8*MB, 10*MB
F1 = 18*MB; F2 = F1 + 16384; EP = F1 + 65536; PROF = 19*MB; WS_SIZE = 20*MB
L_W1, L_ST, L_SA, L_SB, L_END = 0, 114688, 147456, 155648, 163840
SX, SWS, SW1, SW2, SOUT, SWR, SWI, SB1, SB2 = 4, 8, 12, 16, 20, 24, 28, 32, 36
KA = 40
sJ, sT, sG, sMU, sP, sW, sTOK, sTO = 62, 63, 64, 65, 66, 67, 68, 69
t0, t1, t2, t3, t4, t5, t6, t7 = 70, 71, 72, 73, 74, 75, 76, 77
sMASK, sONES = 78, 79
sSTAMP = 82
vTID, vL, vN, vQ = 0, 1, 2, 3
vGA, vL16, vA0, vA1, vA2, vA3, vA4, vA5, vT0, vT1, vT2, vT3 = 4, 5, 6, 7, 8, 9, 10, 11, 12, 13, 14, 15
F32 = 16
TWA = 56
XC = 72
OOB = 0x7ffffff0

def f32bits(x):
    import struct
    return struct.unpack("<I", struct.pack("<f", x))[0]
def lit(x): return hex(f32bits(x))

class K:
    def __init__(self, prof=False, stop=None, opts=None):
        self.E = Emit(); self.prof = prof; self.stop = stop; self.nstamp = 0; self.names = []
        self.o = dict(opts or {})
    def stamp(self, name):
        if not self.prof: return
        E = self.E
        assert self.nstamp < 16
        E(f"s_memrealtime s[{sSTAMP}:{sSTAMP+1}]")
        E("s_waitcnt lgkmcnt(0)")
        E(f"s_mov_b32 s{84+self.nstamp}, s{sSTAMP}")
        self.names.append(name); self.nstamp += 1
    def srd(self, dst, base, nbytes):
        E = self.E
        E(f"s_mov_b32 s{dst}, s{base}"); E(f"s_mov_b32 s{dst+1}, s{base+1}")
        E(f"s_mov_b32 s{dst+2}, {hex(nbytes)}"); E(f"s_mov_b32 s{dst+3}, 0x00020000")
    def checked(self, loads, regs, tag, tmp=vT0, ref=None):
        E = self.E
        lr, lc = E.newlabel("L_retry"), E.newlabel("L_cont")
        def test(emit):
            if ref is None:
                R = list(regs)
                if len(R) == 1: emit(f"v_cmp_eq_u32 vcc, -1, v{R[0]}"); return
                emit(f"v_max3_u32 v{tmp}, v{R[0]}, v{R[1]}, v{R[2] if len(R) > 2 else R[1]}"); R = R[3:]
                while R:
                    emit(f"v_max3_u32 v{tmp}, v{tmp}, v{R[0]}, v{R[1] if len(R) > 1 else R[0]}"); R = R[2:]
                emit(f"v_cmp_eq_u32 vcc, -1, v{tmp}")
            else:
                emit(f"v_cmp_ne_u32 vcc, s{ref}, v{regs[0]}")
        E.wait(vm=tag)
        test(E)
        E(f"s_cbranch_vccnz {lr}")
        E.label(lc)
        o = [f"{lr}:", "    s_nop 7", "    s_nop 7", f"    s_sub_u32 s{sTO}, s{sTO}, 1", f"    s_cbranch_scc1 {lr}_to"]
        o += ["    " + l for l in loads]
        o += ["    s_waitcnt vmcnt(0)"]
        test(lambda t: o.append("    " + t))
        o += [f"    s_cbranch_vccnz {lr}", "    s_nop 7", f"    s_branch {lc}",
              f"{lr}_to:", f"    s_mov_b32 s{sTO}, 0", "    s_nop 7", f"    s_branch {lc}"]
        E.ool += o
    def sincos(self, ang, c, sn, tmp):
        E = self.E
        E(f"v_fract_f32 v{tmp}, v{ang}")
        E(f"v_cos_f32 v{c}, v{tmp}")
        E(f"v_sin_f32 v{sn}, v{tmp}")
    def cmul_pk(self, dr, di, xr, xi, c, sn, t, conj):
        E = self.E
        E(f"v_pk_mul_f32 {v(t,2)}, {v(xi,2)}, {v(sn,2)}")
        E(f"v_pk_mul_f32 {v(t+2,2)}, {v(xr,2)}, {v(sn,2)}")
        n = " neg_lo:[0,0,1] neg_hi:[0,0,1]"
        E(f"v_pk_fma_f32 {v(dr,2)}, {v(xr,2)}, {v(c,2)}, {v(t,2)}" + (n if conj else ""))
        E(f"v_pk_fma_f32 {v(di,2)}, {v(xi,2)}, {v(c,2)}, {v(t+2,2)}" + ("" if conj else n))
    def ln_reduce(self, sa, qa, sb, qb, R, fill=()):
        E = self.E; fill = list(fill)
        def f(n=1):
            for _ in range(n):
                if fill: E(fill.pop(0))
        f(2)
        E(f"v_permlane32_swap_b32 v{sa}, v{sb}")
        E(f"v_permlane32_swap_b32 v{qa}, v{qb}")
        E(f"v_add_f32 v{sa}, v{sa}, v{sb}")
        E(f"v_add_f32 v{qa}, v{qa}, v{qb}")
        f(2)
        E(f"v_permlane16_swap_b32 v{sa}, v{qa}")
        E(f"v_add_f32 v{sa}, v{sa}, v{qa}")
        for r in (8, 4, 2, 1):
            f(2)
            E(f"v_add_f32_dpp v{sa}, v{sa}, v{sa} row_ror:{r} row_mask:0xf bank_mask:0xf")
        E(f"v_mov_b32 v{qa}, v{sa}")
        f(2)
        E(f"v_permlane16_swap_b32 v{sa}, v{qa}")
        E(f"v_mul_f32 v{sa}, {lit(1/512)}, v{sa}")
        E(f"v_mul_f32 v{sb}, v{sa}, v{sa}")
        E(f"v_fma_f32 v{qa}, v{qa}, s{t7}, -v{sb}")
        E(f"v_max_f32 v{qa}, 0, v{qa}")
        E(f"v_add_f32 v{qa}, {lit(1e-5)}, v{qa}")
        E(f"v_rsq_f32 v{R}, v{qa}")
        f(1)
        E(f"v_mul_f32 v{R+1}, v{sa}, v{R}")
        E(f"v_sub_f32 v{R+1}, 0, v{R+1}")
        E(f"v_mov_b32 v{R+2}, v{R}")
        E(f"v_mov_b32 v{R+3}, v{R+1}")
        f(2)
        E(f"v_permlane32_swap_b32 v{R}, v{R+2}")
        E(f"v_permlane32_swap_b32 v{R+1}, v{R+3}")
        f(len(fill))
    def mm16(self, d, x, y, first):
        self.E(f"v_mfma_f32_16x16x32_bf16 {v(d,4)}, {v(x,4)}, {v(y,4)}, {'0' if first else v(d,4)}")
    def f32w(self, T, p, win):
        return F32 + (T*2+p)*10 + {"fi": 0, "fr": 2, "ii": 4, "ir": 6}[win]
    def const_f32(self):
        E = self.E; c = 200; sn = 204; ang = 208; tmp = 209; st = 210
        for T in range(2):
            E(f"v_lshlrev_b32 v{st}, 1, v{vN}")
            if T: E(f"v_add_u32 v{st}, 1, v{st}")
            E(f"v_cvt_f32_u32 v{st}, v{st}")
            E(f"v_mul_f32 v{st}, {lit(1/32)}, v{st}")
            for p in range(2):
                E(f"v_lshlrev_b32 v{ang}, 3, v{vQ}")
                if p: E(f"v_add_u32 v{ang}, 1, v{ang}")
                E(f"v_cvt_f32_u32 v{ang}, v{ang}")
                E(f"v_mul_f32 v{ang}, v{ang}, v{st}")
                for i in range(4):
                    if i: E(f"v_fma_f32 v{ang}, v{st}, 2.0, v{ang}")
                    self.sincos(ang, c+i, sn+i, tmp)
                b = F32 + (T*2+p)*10
                E(f"v_cvt_pk_bf16_f32 v{b+2}, v{c}, v{c+1}")
                E(f"v_cvt_pk_bf16_f32 v{b+3}, v{c+2}, v{c+3}")
                E(f"v_cvt_pk_bf16_f32 v{b+4}, v{sn}, v{sn+1}")
                E(f"v_cvt_pk_bf16_f32 v{b+5}, v{sn+2}, v{sn+3}")
                E(f"v_cvt_pk_bf16_f32 v{b+0}, -v{sn}, -v{sn+1}")
                E(f"v_cvt_pk_bf16_f32 v{b+1}, -v{sn+2}, -v{sn+3}")
                E(f"v_mov_b64 {v(b+6,2)}, {v(b+2,2)}")
                E(f"v_mov_b64 {v(b+8,2)}, {v(b+0,2)}")
    def const_twa(self):
        E = self.E; st = 210; ang = 208; tmp = 209
        E(f"v_cvt_f32_u32 v{st}, v{vN}")
        E(f"v_mul_f32 v{st}, {lit(1/512)}, v{st}")
        for p in range(2):
            E(f"v_lshlrev_b32 v{ang}, 3, v{vQ}")
            if p: E(f"v_add_u32 v{ang}, 1, v{ang}")
            E(f"v_cvt_f32_u32 v{ang}, v{ang}")
            E(f"v_mul_f32 v{ang}, v{ang}, v{st}")
            for i in range(4):
                if i: E(f"v_fma_f32 v{ang}, v{st}, 2.0, v{ang}")
                self.sincos(ang, TWA+4*p+i, TWA+8+4*p+i, tmp)
    def const_f16(self, dst, interleaved):
        E = self.E; c = 200; sn = 204; ang = 208; tmp = 209; st = 210
        E(f"v_cvt_f32_u32 v{st}, v{vN}")
        E(f"v_mul_f32 v{st}, {lit(1/16)}, v{st}")
        E(f"v_lshlrev_b32 v{ang}, 2, v{vQ}")
        E(f"v_cvt_f32_u32 v{ang}, v{ang}")
        E(f"v_mul_f32 v{ang}, v{ang}, v{st}")
        for i in range(4):
            if i: E(f"v_add_f32 v{ang}, v{ang}, v{st}")
            self.sincos(ang, c+i, sn+i, tmp)
        if not interleaved:
            E(f"v_cvt_pk_bf16_f32 v{dst+2}, v{c}, v{c+1}")
            E(f"v_cvt_pk_bf16_f32 v{dst+3}, v{c+2}, v{c+3}")
            E(f"v_cvt_pk_bf16_f32 v{dst+4}, v{sn}, v{sn+1}")
            E(f"v_cvt_pk_bf16_f32 v{dst+5}, v{sn+2}, v{sn+3}")
            E(f"v_cvt_pk_bf16_f32 v{dst+0}, -v{sn}, -v{sn+1}")
            E(f"v_cvt_pk_bf16_f32 v{dst+1}, -v{sn+2}, -v{sn+3}")
        else:
            for i in range(4):
                E(f"v_cvt_pk_bf16_f32 v{dst+i}, v{c+i}, -v{sn+i}")
                E(f"v_cvt_pk_bf16_f32 v{dst+4+i}, v{sn+i}, v{c+i}")
    def const_f64(self, dst):
        E = self.E; c = 240; sn = 241; ang = 242; tmp = 243; st = 244; a0 = 245
        E(f"s_lshl_b32 s{t0}, s{sW}, 4")
        E(f"v_add_u32 v{st}, s{t0}, v{vN}")
        E(f"v_cvt_f32_u32 v{st}, v{st}")
        E(f"v_mul_f32 v{st}, {lit(1/64)}, v{st}")
        E(f"v_lshlrev_b32 v{a0}, 2, v{vQ}")
        E(f"v_cvt_f32_u32 v{a0}, v{a0}")
        for j in range(4):
            if j: E(f"v_add_f32 v{a0}, {lit(16.0)}, v{a0}")
            E(f"v_mul_f32 v{ang}, v{a0}, v{st}")
            for i in range(4):
                if i: E(f"v_add_f32 v{ang}, v{ang}, v{st}")
                self.sincos(ang, c, sn, tmp)
                b = dst + 16*j + i
                E(f"v_cvt_pk_bf16_f32 v{b+0}, v{c}, v{sn}")
                E(f"v_cvt_pk_bf16_f32 v{b+4}, -v{sn}, v{c}")
                E(f"v_cvt_pk_bf16_f32 v{b+8}, v{c}, -v{sn}")
                E(f"v_cvt_pk_bf16_f32 v{b+12}, v{sn}, v{c}")
    def const_twb(self, fw, iv):
        E = self.E; ang = 242; tmp = 243; st = 244; a0 = 245
        E(f"s_lshl_b32 s{t0}, s{sW}, 4")
        E(f"v_add_u32 v{st}, s{t0}, v{vN}")
        E(f"v_cvt_f32_u32 v{st}, v{st}")
        E(f"v_mul_f32 v{st}, {lit(1/2048)}, v{st}")
        E(f"v_lshlrev_b32 v{a0}, 3, v{vQ}")
        E(f"v_cvt_f32_u32 v{a0}, v{a0}")
        E(f"v_mul_f32 v{ang}, v{a0}, v{st}")
        for i in range(4):
            for p in range(2):
                if i or p: E(f"v_add_f32 v{ang}, v{ang}, v{st}")
                self.sincos(ang, fw+8*p+i, fw+8*p+4+i, tmp)
        for r in range(0, 16, 2):
            E(f"v_pk_mul_f32 {v(fw+r,2)}, {v(fw+r,2)}, s[{t4}:{t4+1}]")
        E(f"v_lshlrev_b32 v{a0}, 2, v{vQ}")
        E(f"v_add_u32 v{a0}, s{t0}, v{a0}")
        E(f"v_cvt_f32_u32 v{a0}, v{a0}")
        E(f"v_mul_f32 v{a0}, {lit(1/2048)}, v{a0}")
        E(f"v_lshlrev_b32 v{st}, 1, v{vN}")
        E(f"v_cvt_f32_u32 v{st}, v{st}")
        for i in range(4):
            if i: E(f"v_add_f32 v{a0}, {lit(1/2048)}, v{a0}")
            E(f"v_mul_f32 v{ang}, v{a0}, v{st}")
            self.sincos(ang, iv+i, iv+4+i, tmp)
            E(f"v_add_f32 v{ang}, v{ang}, v{a0}")
            self.sincos(ang, iv+8+i, iv+12+i, tmp)
        for r in range(0, 16, 2):
            E(f"v_pk_mul_f32 {v(iv+r,2)}, {v(iv+r,2)}, s[{t2}:{t2+1}]")
    def w1_dma(self, units):
        E = self.E
        E("s_bfm_b64 exec, 56, 0")
        for u in units:
            gl, e2 = u >> 1, u & 1
            n, q = gl >> 2, gl & 3
            E(f"s_add_u32 m0, s80, {u*896}")
            E(f"s_add_u32 s{t0}, s81, {(32*n+16*e2+4*q)*3584}")
            E(f"buffer_load_dwordx4 v{vA4}, {s(SW1,4)}, s{t0} offen lds", tag="w1")
        E("s_mov_b64 exec, -1")
    def w2_dma(self, b):
        E = self.E
        for x in range(8):
            E(f"s_add_u32 m0, s100, {x*1024}")
            E(f"s_add_u32 s{t0}, s101, {(64*b+8*x)*1024}")
            E(f"buffer_load_dwordx4 v{vA5}, {s(SW2,4)}, s{t0} offen lds", tag=f"w2_{b}")
    def w2_read(self, b, addr):
        E = self.E
        E.wait(vm=f"w2_{b}")
        for ksl in range(4):
            for V in range(2):
                for e2 in range(2):
                    d = ((4*b+ksl)*2+V)*4 + 2*e2
                    E(f"ds_read_b64_tr_b16 {a(d,2)}, v{addr} offset:{ksl*2048+e2*1024+V*256}", tag="w2r")
        E.wait(lg="w2r")
    def build(self):
        E = self.E; o = self.o
        E("s_cmp_ge_u32 s2, 256")
        E("s_cbranch_scc1 L_end")
        E(f"s_load_dwordx16 s[{KA}:{KA+15}], s[0:1], 0")
        E(f"s_load_dwordx4 s[{KA+16}:{KA+19}], s[0:1], 64")
        E(f"s_load_dwordx2 s[{KA+20}:{KA+21}], s[0:1], 80")
        if self.prof:
            E(f"s_memrealtime s[{sSTAMP}:{sSTAMP+1}]")
        E(f"v_lshrrev_b32 v{vT0}, 6, v0")
        E(f"v_and_b32 v{vL}, 63, v0")
        E(f"v_readfirstlane_b32 s{sW}, v{vT0}")
        E(f"v_and_b32 v{vN}, 15, v0")
        E(f"v_lshrrev_b32 v{vQ}, 4, v{vL}")
        E(f"s_and_b32 s{sJ}, s2, 7"); E(f"s_lshr_b32 s{sT}, s2, 3")
        E(f"s_lshl_b32 s{sP}, s{sJ}, 5"); E(f"s_add_u32 s{sP}, s{sP}, s{sT}")
        E(f"s_lshr_b32 s{sG}, s{sP}, 4"); E(f"s_and_b32 s{sMU}, s{sP}, 15")
        E(f"s_mov_b32 s{sTO}, 200000")
        E(f"s_mov_b32 s{sMASK}, 0xffff0000"); E(f"s_mov_b32 s{sONES}, 0x3f803f80")
        E(f"s_mov_b32 s{t7}, {lit(1/512)}")
        E(f"v_lshlrev_b32 v{vL16}, 4, v{vL}")
        E(f"v_and_b32 v{vT0}, 31, v{vL}"); E(f"v_lshrrev_b32 v{vT1}, 5, v{vL}")
        E(f"v_lshlrev_b32 v{vGA}, 13, v{vT0}"); E(f"v_lshl_add_u32 v{vGA}, v{vT1}, 4, v{vGA}")
        E(f"v_lshlrev_b32 v{vA0}, 8, v{vQ}"); E(f"v_lshl_add_u32 v{vA0}, v{vN}, 2, v{vA0}")
        E(f"s_lshl_b32 s{t0}, s{sG}, 7"); E(f"s_lshl_b32 s{t1}, s{sW}, 5"); E(f"s_add_u32 s{t0}, s{t0}, s{t1}")
        E(f"s_lshl_b32 s{t1}, s{sMU}, 1"); E(f"s_add_u32 s{t0}, s{t0}, s{t1}"); E(f"s_lshl_b32 s{t6}, s{t0}, 10")
        F16A = 80
        self.const_f16(F16A, False)
        self.const_twa()
        E("s_waitcnt lgkmcnt(0)")
        if self.prof:
            E(f"s_mov_b32 s84, s{sSTAMP}"); self.names.append("start"); self.nstamp = 1
        self.stamp("karg")
        self.srd(SX, KA+0, 2097152)
        XR = 86
        for r in range(2):
            for i in range(4):
                E(f"buffer_load_dword v{XR+4*r+i}, v{vA0}, {s(SX,4)}, s{t6} offen offset:{1024*r+64*i}", tag="x")
        self.srd(SWS, KA+20, WS_SIZE)
        CL = 96
        for r in range(4): E(f"v_mov_b32 v{CL+r}, -1")
        E(f"v_lshlrev_b32 v{vA1}, 4, v0")
        E(f"s_lshl_b32 s{t0}, s{sP}, 13")
        E(f"buffer_store_dwordx4 {v(CL,4)}, v{vA1}, {s(SWS,4)}, s{t0} offen sc1", tag="clr")
        E(f"s_add_u32 s{t1}, s{t0}, 4096")
        E(f"buffer_store_dwordx4 {v(CL,4)}, v{vA1}, {s(SWS,4)}, s{t1} offen sc1", tag="clr")
        E(f"v_bfe_u32 v{vT0}, v{vL}, 4, 1"); E(f"v_lshlrev_b32 v{vA2}, 9, v{vT0}")
        E(f"v_lshl_add_u32 v{vA2}, v{vN}, 5, v{vA2}")
        E(f"v_lshrrev_b32 v{vT0}, 5, v{vL}"); E(f"v_lshl_add_u32 v{vA2}, v{vT0}, 4, v{vA2}")
        E(f"s_lshl_b32 s{t1}, s{sW}, 11"); E(f"s_add_u32 s{t1}, s{t1}, s{t0}"); E(f"s_add_u32 s{t1}, s{t1}, {X2}")
        E(f"buffer_store_dwordx4 {v(CL,4)}, v{vA2}, {s(SWS,4)}, s{t1} offen sc1", tag="clr")
        E(f"buffer_store_dwordx4 {v(CL,4)}, v{vA2}, {s(SWS,4)}, s{t1} offen offset:1024 sc1", tag="clr")
        E(f"v_lshrrev_b32 v{vT0}, 3, v0"); E(f"v_lshlrev_b32 v{vA3}, 13, v{vT0}")
        E(f"v_and_b32 v{vT0}, 7, v0"); E(f"v_lshl_add_u32 v{vA3}, v{vT0}, 4, v{vA3}")
        def wt_soff(d, tmp):
            E(f"s_lshr_b32 s{d}, s{sP}, 2"); E(f"s_lshl_b32 s{d}, s{d}, 7")
            E(f"s_and_b32 s{tmp}, s{sP}, 3"); E(f"s_lshl_b32 s{tmp}, s{tmp}, 19")
            E(f"s_add_u32 s{d}, s{d}, s{tmp}"); E(f"s_add_u32 s{d}, s{d}, {WT}")
        wt_soff(t1, t2)
        E(f"buffer_store_dwordx4 {v(CL,4)}, v{vA3}, {s(SWS,4)}, s{t1} offen sc1", tag="clr")
        E(f"s_add_u32 s{t1}, s{t1}, {32*8192}")
        E(f"buffer_store_dwordx4 {v(CL,4)}, v{vA3}, {s(SWS,4)}, s{t1} offen sc1", tag="clr")
        EPV = 100
        E(f"v_mov_b32 v{vT0}, {hex(EP)}")
        E(f"buffer_load_dword v{EPV}, v{vT0}, {s(SWS,4)}, 0 offen sc1", tag="clr")
        self.srd(SWR, KA+2, 2048*514); self.srd(SWI, KA+4, 2048*514)
        E(f"s_lshr_b32 s{t0}, s{sP}, 6"); E(f"s_lshl_b32 s{t0}, s{t0}, 4")
        E(f"s_bfe_u32 s{t1}, s{sP}, 0x10002"); E(f"s_lshl_b32 s{t1}, s{t1}, 3"); E(f"s_add_u32 s{t0}, s{t0}, s{t1}")
        E(f"s_bfe_u32 s{t1}, s{sP}, 0x20003"); E(f"s_lshl_b32 s{t1}, s{t1}, 9"); E(f"s_add_u32 s{t0}, s{t0}, s{t1}")
        E(f"s_bfe_u32 s{t1}, s{sP}, 0x10005"); E(f"s_lshl_b32 s{t1}, s{t1}, 8"); E(f"s_add_u32 s{t0}, s{t0}, s{t1}")
        E(f"s_lshl_b32 s{t1}, s{sW}, 1"); E(f"s_add_u32 s{t0}, s{t0}, s{t1}")
        E(f"s_mul_i32 s{t0}, s{t0}, 514")
        E(f"s_and_b32 s{t1}, s{sP}, 3"); E(f"s_lshl_b32 s{t1}, s{t1}, 7"); E(f"s_add_u32 s{t0}, s{t0}, s{t1}")
        E(f"s_add_u32 s{t0}, s{t0}, 2")
        E(f"v_lshlrev_b32 v{vT1}, 1, v{vL}")
        WRW = 150
        for jj in range(4):
            for dn in range(2):
                E(f"buffer_load_ushort v{WRW+4*dn+jj}, v{vT1}, {s(SWR,4)}, s{t0} offen offset:{514*dn}", tag="W")
                E(f"buffer_load_ushort v{WRW+8+4*dn+jj}, v{vT1}, {s(SWI,4)}, s{t0} offen offset:{514*dn}", tag="W")
            if jj < 3: E(f"s_add_u32 s{t0}, s{t0}, {64*514}")
        E(f"v_lshlrev_b32 v{vT2}, 6, v{vN}"); E(f"v_lshl_add_u32 v{vT2}, v{vQ}, 3, v{vT2}")
        for r in range(2):
            for T in range(2):
                E(f"buffer_load_dwordx2 {v(XC+4*r+2*T,2)}, v{vT2}, {s(SX,4)}, s{t6} offen offset:{1024*r+32*T}", tag="W")
        self.srd(SW1, KA+8, 512*1792*2); self.srd(SW2, KA+12, 1792*512*2); self.srd(SOUT, KA+16, 2097152)
        self.srd(SB1, KA+10, 1792*2); self.srd(SB2, KA+14, 512*2)
        E(f"v_bfe_u32 v{vT0}, v{vL}, 2, 2"); E(f"v_mul_u32_u24 v{vA4}, 3584, v{vT0}")
        E(f"v_lshl_add_u32 v{vA4}, v{vQ}, 6, v{vA4}")
        E(f"v_and_b32 v{vT0}, 3, v{vL}"); E(f"v_lshl_add_u32 v{vA4}, v{vT0}, 4, v{vA4}")
        E(f"v_bfe_u32 v{vT0}, v{vL}, 1, 2"); E(f"v_mul_u32_u24 v{vT0}, 3584, v{vT0}")
        E(f"v_and_b32 v{vT3}, 1, v{vL}"); E(f"v_lshl_add_u32 v{vT0}, v{vT3}, 4, v{vT0}")
        E(f"v_add_u32 v{vT0}, 192, v{vT0}")
        E(f"v_cmp_le_u32 vcc, 48, v{vL}")
        E(f"v_cndmask_b32 v{vA4}, v{vA4}, v{vT0}, vcc")
        E(f"s_mul_i32 s80, s{sW}, {32*896}")
        E(f"s_mul_i32 s81, s{sW}, {128*3584}"); E(f"s_mul_i32 s{t0}, s{sMU}, 224"); E(f"s_add_u32 s81, s81, s{t0}")
        E(f"v_lshrrev_b32 v{vT0}, 5, v{vL}"); E(f"v_lshlrev_b32 v{vA5}, 12, v{vT0}")
        E(f"v_bfe_u32 v{vT0}, v{vL}, 2, 2"); E(f"v_lshl_add_u32 v{vA5}, v{vT0}, 10, v{vA5}")
        E(f"v_bfe_u32 v{vT0}, v{vL}, 4, 1"); E(f"v_lshl_add_u32 v{vA5}, v{vT0}, 6, v{vA5}")
        E(f"v_and_b32 v{vT0}, 3, v{vL}"); E(f"v_lshl_add_u32 v{vA5}, v{vT0}, 4, v{vA5}")
        E(f"s_lshl_b32 s100, s{sW}, 13"); E(f"s_add_u32 s100, s100, {L_ST}")
        E(f"s_mul_i32 s101, s{sW}, {448*1024}"); E(f"s_and_b32 s{t0}, s{sMU}, 7"); E(f"s_lshl_b32 s{t0}, s{t0}, 7")
        E(f"s_add_u32 s101, s101, s{t0}")
        self.const_f32()
        E.wait(vm="x")
        self.stamp("x")
        sa, qa, sb, qb = 110, 111, 112, 113
        for i in range(4):
            for (r, S_, Q_) in ((0, sa, qa), (1, sb, qb)):
                x = XR+4*r+i
                E(f"v_dot2_f32_bf16 v{S_}, v{x}, s{sONES}, {'0' if i == 0 else v(S_)}")
                E(f"v_dot2_f32_bf16 v{Q_}, v{x}, v{x}, {'0' if i == 0 else v(Q_)}")
        U = 130
        fill = []
        for r in range(2):
            for i in range(4):
                fill.append(f"v_lshlrev_b32 v{U+8*r+i}, 16, v{XR+4*r+i}")
                fill.append(f"v_and_b32 v{U+8*r+4+i}, s{sMASK}, v{XR+4*r+i}")
        RR = 114
        self.ln_reduce(sa, qa, sb, qb, RR, fill)
        E.wait(vm="clr")
        E("s_barrier")
        E(f"v_readfirstlane_b32 s{sTOK}, v{EPV}")
        for r in range(2):
            for h in range(0, 8, 2):
                E(f"v_pk_fma_f32 {v(U+8*r+h,2)}, {v(U+8*r+h,2)}, {v(RR+2*r,2)}, {v(RR+2*r,2)} op_sel:[0,0,1] op_sel_hi:[1,0,1]")
        E(f"s_add_u32 s{t5}, s{sTOK}, 1")
        E(f"s_add_u32 s{sTOK}, s{sTOK}, 0x5bd1e995")
        OP = 122
        for p in range(2):
            for r in range(2):
                for h in range(2):
                    E(f"v_cvt_pk_bf16_f32 v{OP+4*p+2*r+h}, v{U+8*r+4*p+2*h}, v{U+8*r+4*p+2*h+1}")
        AC = 170
        for p in range(2):
            self.mm16(AC+4*p, OP+4*p, F16A+2, True)
            self.mm16(AC+8+4*p, OP+4*p, F16A+0, True)
        E(f"s_lshl_b32 s{t0}, s{sP}, 6"); E(f"s_add_u32 s{t0}, s{t0}, {F1}")
        E(f"v_mov_b32 v{vT0}, {hex(OOB)}"); E(f"v_mov_b32 v{vT1}, s{t0}")
        E(f"v_cmp_eq_u32 vcc, 0, v0"); E(f"v_cndmask_b32 v{vT0}, v{vT0}, v{vT1}, vcc")
        E(f"v_mov_b32 v{vT1}, s{sTOK}")
        E(f"buffer_store_dword v{vT1}, v{vT0}, {s(SWS,4)}, 0 offen sc1", tag="f1s")
        TM = 186; Y = 130
        for p in range(2):
            for h in range(0, 4, 2):
                self.cmul_pk(Y+4*p+h, Y+8+4*p+h, AC+4*p+h, AC+8+4*p+h, TWA+4*p+h, TWA+8+4*p+h, TM, False)
        for p in range(2):
            for part in range(2):
                for h in range(2):
                    E(f"v_cvt_pk_bf16_f32 v{OP+4*p+2*part+h}, v{Y+8*part+4*p+2*h}, v{Y+8*part+4*p+2*h+1}")
        for p in range(2):
            for T in range(2):
                self.mm16(AC+4*T, self.f32w(T, p, "fr"), OP+4*p, p == 0)
                self.mm16(AC+8+4*T, self.f32w(T, p, "fi"), OP+4*p, p == 0)
        E(f"v_lshlrev_b32 v{vT2}, 9, v{vQ}"); E(f"v_lshl_add_u32 v{vT2}, v{vN}, 2, v{vT2}")
        E(f"s_lshl_b32 s{t0}, s{sW}, 11"); E(f"s_add_u32 s{t0}, s{t0}, {L_SA}"); E(f"v_add_u32 v{vT2}, s{t0}, v{vT2}")
        E(f"v_lshrrev_b32 v{vT0}, 1, v0"); E(f"v_add_u32 v{vT3}, 1, v{vT0}"); E(f"v_sub_u32 v{vT0}, 511, v{vT0}")
        E(f"v_and_b32 v{vT1}, 1, v0"); E(f"v_cmp_eq_u32 vcc, 1, v{vT1}")
        E(f"v_add_u32 v{Y}, 128, v{vT3}"); E(f"v_subrev_u32 v{Y+1}, 128, v{vT0}")
        E(f"v_cndmask_b32 v{vT3}, v{vT3}, v{vT0}, vcc"); E(f"v_cndmask_b32 v{vT0}, v{Y}, v{Y+1}, vcc")
        E(f"v_lshlrev_b32 v{vT3}, 2, v{vT3}"); E(f"v_lshlrev_b32 v{vT0}, 2, v{vT0}")
        E(f"v_add_u32 v{vT3}, {L_SA}, v{vT3}"); E(f"v_add_u32 v{vT0}, {L_SA}, v{vT0}")
        for T in range(2):
            for i in range(4):
                E(f"v_cvt_pk_bf16_f32 v{Y+4*T+i}, v{AC+4*T+i}, v{AC+8+4*T+i}")
                E(f"ds_write_b32 v{vT2}, v{Y+4*T+i} offset:{128*i+64*T}", tag="a")
        FP = 101
        E(f"s_lshl_b32 s{t0}, s{sW}, 12"); E(f"s_add_u32 s{t0}, s{t0}, {F1}")
        E(f"v_lshlrev_b32 v{vA0}, 6, v{vL}")
        f1load = f"buffer_load_dword v{FP}, v{vA0}, {s(SWS,4)}, s{t0} offen sc1"
        E(f"s_mov_b32 s{t3}, s{t0}")
        f1load = f1load.replace(f"s{t0} offen", f"s{t3} offen")
        E(f1load, tag="f1p")
        E.wait(lg="a")
        E("s_barrier")
        D = 138
        for h, ad in ((0, vT3), (1, vT0)):
            E(f"ds_read2st64_b32 {v(D+4*h,2)}, v{ad} offset0:0 offset1:8", tag=f"a{h}")
            E(f"ds_read2st64_b32 {v(D+4*h+2,2)}, v{ad} offset0:16 offset1:24", tag=f"a{h}")
        E(f"s_lshl_b32 s{t0}, s{sP}, 13"); E(f"s_add_u32 s{t1}, s{t0}, 4096")
        E.wait(lg="a0")
        E(f"buffer_store_dwordx4 {v(D,4)}, v{vA1}, {s(SWS,4)}, s{t0} offen sc1", tag="x1s")
        E.wait(lg="a1")
        E(f"buffer_store_dwordx4 {v(D+4,4)}, v{vA1}, {s(SWS,4)}, s{t1} offen sc1", tag="x1s")
        self.stamp("A_st")
        E.wait(vm="W")
        for r in range(8):
            E(f"v_lshl_or_b32 v{WRW+r}, v{WRW+8+r}, 16, v{WRW+r}")
        E(f"s_lshl_b32 s{t0}, s{sW}, 1"); E(f"v_and_b32 v{vT0}, 7, v{vL}"); E(f"v_xor_b32 v{vT0}, s{t0}, v{vT0}")
        E(f"v_lshlrev_b32 v{vT0}, 4, v{vT0}"); E(f"v_lshl_add_u32 v{vT0}, v{vL}, 7, v{vT0}"); E(f"v_add_u32 v{vT0}, {L_SB}, v{vT0}")
        E(f"v_xor_b32 v{vT1}, 16, v{vT0}")
        E(f"ds_write_b128 v{vT0}, {v(WRW,4)}", tag="w"); E(f"ds_write_b128 v{vT1}, {v(WRW+4,4)}", tag="w")
        E(f"v_lshrrev_b32 v{vT2}, 3, v0"); E(f"v_xor_b32 v{vT3}, v{vT2}, v0"); E(f"v_and_b32 v{vT3}, 7, v{vT3}")
        E(f"v_lshlrev_b32 v{vT3}, 4, v{vT3}"); E(f"v_lshl_add_u32 v{vT3}, v{vT2}, 7, v{vT3}"); E(f"v_add_u32 v{vT3}, {L_SB}, v{vT3}")
        self.checked([f1load], [FP], "f1p", ref=sTOK)
        E.wait(lg="w")
        E("s_barrier")
        E(f"ds_read_b128 {v(WRW+8,4)}, v{vT3}", tag="w0"); E(f"ds_read_b128 {v(WRW+12,4)}, v{vT3} offset:4096", tag="w1r")
        wt_soff(t1, t2)
        E(f"s_add_u32 s{t2}, s{t1}, {32*8192}")
        E.wait(lg="w0")
        E(f"buffer_store_dwordx4 {v(WRW+8,4)}, v{vA3}, {s(SWS,4)}, s{t1} offen sc1", tag="wts")
        E.wait(lg="w1r")
        E(f"buffer_store_dwordx4 {v(WRW+12,4)}, v{vA3}, {s(SWS,4)}, s{t2} offen sc1", tag="wts")
        E(f"v_mov_b32 v{vT0}, {hex(OOB)}"); E(f"v_mov_b32 v{vT1}, {hex(EP)}")
        E(f"s_cmp_eq_u32 s2, 0"); E(f"s_cselect_b32 s{t0}, 0, 1")
        E(f"v_cmp_eq_u32 vcc, s{t0}, v0"); E(f"s_cselect_b64 vcc, vcc, 0")
        E(f"v_cndmask_b32 v{vT0}, v{vT0}, v{vT1}, vcc"); E(f"v_mov_b32 v{vT1}, s{t5}")
        E(f"buffer_store_dword v{vT1}, v{vT0}, {s(SWS,4)}, 0 offen", tag="eps")
        E(f"v_lshrrev_b32 v{vT0}, 3, v0"); E(f"v_lshlrev_b32 v{vA3}, 9, v{vT0}")
        E(f"v_and_b32 v{vT0}, 7, v0"); E(f"v_lshl_add_u32 v{vA3}, v{vT0}, 4, v{vA3}")
        def ln2_soff(d, tmp):
            E(f"s_lshl_b32 s{d}, s{sG}, 17"); E(f"s_lshr_b32 s{tmp}, s{sMU}, 2"); E(f"s_lshl_b32 s{tmp}, s{tmp}, 15")
            E(f"s_add_u32 s{d}, s{d}, s{tmp}"); E(f"s_and_b32 s{tmp}, s{sMU}, 3"); E(f"s_lshl_b32 s{tmp}, s{tmp}, 7")
            E(f"s_add_u32 s{d}, s{d}, s{tmp}"); E(f"s_add_u32 s{d}, s{d}, {LN2}")
        ln2_soff(t1, t2)
        E(f"s_add_u32 s{t2}, s{t1}, 16384")
        E(f"buffer_store_dwordx4 {v(CL,4)}, v{vA3}, {s(SWS,4)}, s{t1} offen sc1", tag="clr2")
        E(f"buffer_store_dwordx4 {v(CL,4)}, v{vA3}, {s(SWS,4)}, s{t2} offen sc1", tag="clr2")
        if self.stop == "A":
            return self.finish()
        self.w1_dma(range(0, 32))
        F64, TF, TI, WF, DZ, A1, A2 = 80, 144, 160, 176, 192, 224, 240
        E(f"s_mov_b32 s{t4}, {lit(2.0**-11)}"); E(f"s_mov_b32 s{t5}, {lit(2.0**-11)}")
        E(f"s_mov_b32 s{t2}, {lit(2.0**-10)}"); E(f"s_mov_b32 s{t3}, {lit(2.0**-10)}")
        self.const_f64(F64)
        self.const_twb(TF, TI)
        E(f"s_lshl_b32 s{t0}, s{sW}, 19"); E(f"s_lshl_b32 s{t1}, s{sP}, 5"); E(f"s_add_u32 s{t0}, s{t0}, s{t1}")
        E(f"s_add_u32 s{t1}, s{t0}, {32*8192}")
        E(f"s_lshl_b32 s{t2}, s{sP}, 13"); E(f"s_lshl_b32 s{t3}, s{sW}, 11"); E(f"s_add_u32 s{t2}, s{t2}, s{t3}")
        E(f"s_add_u32 s{t2}, s{t2}, {WT}")
        RW = A2
        E.wait(vm="x1s")
        lds = [f"buffer_load_dwordx4 {v(DZ,4)}, v{vGA}, {s(SWS,4)}, s{t0} offen sc1",
               f"buffer_load_dwordx4 {v(DZ+4,4)}, v{vGA}, {s(SWS,4)}, s{t1} offen sc1",
               f"buffer_load_dwordx4 {v(RW,4)}, v{vL16}, {s(SWS,4)}, s{t2} offen sc1",
               f"buffer_load_dwordx4 {v(RW+4,4)}, v{vL16}, {s(SWS,4)}, s{t2} offen offset:1024 sc1"]
        for l in lds: E(l, tag="x1p")
        E(f"v_lshrrev_b32 v{vT0}, 5, v{vL}"); E(f"v_lshlrev_b32 v{vT0}, 12, v{vT0}")
        E(f"v_and_b32 v{vT1}, 31, v{vL}"); E(f"v_lshl_add_u32 v{vT0}, v{vT1}, 4, v{vT0}")
        E(f"s_lshl_b32 s{t3}, s{sW}, 10"); E(f"s_add_u32 s{t4}, s{t3}, {L_SA}"); E(f"v_add_u32 v{vA0}, s{t4}, v{vT0}")
        E(f"v_add_u32 v{vA1}, {L_SA}, v{vL16}")
        E(f"v_add_u32 v{vT3}, {L_SB}, v{vL16}"); E(f"v_add_u32 v{vT2}, s{t3}, v{vT3}")
        self.checked(lds, list(range(DZ, DZ+8)) + list(range(RW, RW+8)), "x1p")
        self.stamp("X1")
        E(f"ds_write_b128 v{vA0}, {v(DZ,4)}", tag="b"); E(f"ds_write_b128 v{vA0}, {v(DZ+4,4)} offset:512", tag="b")
        for T in range(2):
            for i in range(4):
                E(f"v_lshlrev_b32 v{WF+4*T+i}, 16, v{RW+2*i+T}")
                E(f"v_and_b32 v{WF+8+4*T+i}, s{sMASK}, v{RW+2*i+T}")
        E.wait(lg="b")
        E("s_barrier")
        for j in range(4):
            for wh in range(2):
                E(f"ds_read_b128 {v(DZ+16*wh+4*j,4)}, v{vA1} offset:{4096*wh+1024*j}", tag=f"b{j}")
        for j in range(4):
            E.wait(lg=f"b{j}")
            self.mm16(A1+0, DZ+4*j, F64+16*j+0, j == 0)
            self.mm16(A1+4, DZ+4*j, F64+16*j+4, j == 0)
            self.mm16(A1+8, DZ+16+4*j, F64+16*j+8, j == 0)
            self.mm16(A1+12, DZ+16+4*j, F64+16*j+12, j == 0)
        Er, Ei, Or, Oi, TM = DZ, DZ+4, DZ+8, DZ+12, DZ+16
        ng = " neg_lo:[0,1] neg_hi:[0,1]"
        for h in (0, 2):
            E(f"v_pk_add_f32 {v(Er+h,2)}, {v(A1+h,2)}, {v(A1+8+h,2)}")
            E(f"v_pk_add_f32 {v(Ei+h,2)}, {v(A1+4+h,2)}, {v(A1+12+h,2)}" + ng)
            E(f"v_pk_add_f32 {v(Or+h,2)}, {v(A1+4+h,2)}, {v(A1+12+h,2)}")
            E(f"v_pk_add_f32 {v(Oi+h,2)}, {v(A1+8+h,2)}, {v(A1+h,2)}" + ng)
        for h in (0, 2):
            self.cmul_pk(A1+h, A1+4+h, Er+h, Ei+h, TF+h, TF+4+h, TM, False)
            self.cmul_pk(A1+8+h, A1+12+h, Or+h, Oi+h, TF+8+h, TF+12+h, TM+4, False)
        OP = DZ+24
        for r in range(8):
            E(f"v_cvt_pk_bf16_f32 v{OP+r}, v{A1+2*r}, v{A1+2*r+1}")
        for p in range(2):
            for T in range(2):
                self.mm16(A2+8*T, self.f32w(T, p, "fr"), OP+4*p, p == 0)
                self.mm16(A2+8*T+4, self.f32w(T, p, "fi"), OP+4*p, p == 0)
        for T in range(2):
            for h in (0, 2):
                self.cmul_pk(A1+8*T+h, A1+8*T+4+h, A2+8*T+h, A2+8*T+4+h, WF+4*T+h, WF+8+4*T+h, TM+4*T, True)
        for r in range(8):
            E(f"v_cvt_pk_bf16_f32 v{OP+r}, v{A1+2*r}, v{A1+2*r+1}")
        for T in range(2):
            for Uu in range(2):
                self.mm16(A2+8*Uu, OP+4*T, self.f32w(Uu, T, "ir"), T == 0)
                self.mm16(A2+8*Uu+4, OP+4*T, self.f32w(Uu, T, "ii"), T == 0)
        for Uu in range(2):
            for h in (0, 2):
                self.cmul_pk(A1+8*Uu+h, A1+8*Uu+4+h, A2+8*Uu+h, A2+8*Uu+4+h, TI+8*Uu+h, TI+8*Uu+4+h, TM+4*Uu, True)
        Pr, Pi, Qr, Qi = DZ, DZ+4, DZ+8, DZ+12
        for h in (0, 2):
            E(f"v_pk_add_f32 {v(Pr+h,2)}, {v(A1+h,2)}, {v(A1+12+h,2)}" + ng)
            E(f"v_pk_add_f32 {v(Pi+h,2)}, {v(A1+4+h,2)}, {v(A1+8+h,2)}")
            E(f"v_pk_add_f32 {v(Qr+h,2)}, {v(A1+h,2)}, {v(A1+12+h,2)}")
            E(f"v_pk_add_f32 {v(Qi+h,2)}, {v(A1+8+h,2)}, {v(A1+4+h,2)}" + ng)
        for i in range(4):
            E(f"v_cvt_pk_bf16_f32 v{OP+i}, v{Pr+i}, v{Pi+i}")
        E(f"ds_write_b128 v{vT2}, {v(OP,4)}", tag="b")
        for i in range(4):
            E(f"v_cvt_pk_bf16_f32 v{OP+4+i}, v{Qr+i}, v{Qi+i}")
        E(f"ds_write_b128 v{vT2}, {v(OP+4,4)} offset:4096", tag="b")
        E.wait(lg="b")
        E("s_barrier")
        for j in range(4):
            for wh in range(2):
                E(f"ds_read_b128 {v(DZ+16*wh+4*j,4)}, v{vT3} offset:{4096*wh+1024*j}", tag=f"b{j}")
        for j in range(4):
            E.wait(lg=f"b{j}")
            self.mm16(A1+0, F64+16*j+8, DZ+4*j, j == 0)
            self.mm16(A1+4, F64+16*j+12, DZ+4*j, j == 0)
            self.mm16(A1+8, F64+16*j+0, DZ+16+4*j, j == 0)
            self.mm16(A1+12, F64+16*j+4, DZ+16+4*j, j == 0)
        E(f"s_lshl_b32 s{t0}, s{sP}, 13"); E(f"s_lshl_b32 s{t1}, s{sW}, 11"); E(f"s_add_u32 s{t0}, s{t0}, s{t1}")
        E(f"s_add_u32 s{t0}, s{t0}, {X2}")
        E("s_nop 7")
        ls = E.newlabel("L_nonyq")
        E(f"s_cmp_lg_u32 s{sP}, 255"); E(f"s_cbranch_scc1 {ls}")
        for r in range(8):
            E(f"v_add_f32 v{A1+r}, v{A1+r}, v{A1+8+r}"); E(f"v_mul_f32 v{A1+r}, 0.5, v{A1+r}"); E(f"v_mov_b32 v{A1+8+r}, 0")
        E.label(ls)
        for i in range(4):
            E(f"v_cvt_pk_bf16_f32 v{DZ+i}, v{A1+i}, v{A1+4+i}")
            E(f"v_cvt_pk_bf16_f32 v{DZ+4+i}, v{A1+8+i}, v{A1+12+i}")
        for i in range(4):
            E(f"v_permlane32_swap_b32 v{DZ+i}, v{DZ+4+i}")
        E.wait(vm="clr2")
        E(f"buffer_store_dwordx4 {v(DZ,4)}, v{vA2}, {s(SWS,4)}, s{t0} offen sc1", tag="x2s")
        E(f"buffer_store_dwordx4 {v(DZ+4,4)}, v{vA2}, {s(SWS,4)}, s{t0} offen offset:1024 sc1", tag="x2s")
        self.stamp("B_st")
        if self.stop == "B":
            return self.finish()
        vW2 = vA5 + 0
        E(f"v_lshrrev_b32 v{vT0}, 5, v{vL}"); E(f"v_lshlrev_b32 v{vA2}, 9, v{vT0}")
        E(f"v_bfe_u32 v{vT0}, v{vL}, 2, 2"); E(f"v_lshl_add_u32 v{vA2}, v{vT0}, 6, v{vA2}")
        E(f"v_bfe_u32 v{vT0}, v{vL}, 4, 1"); E(f"v_lshl_add_u32 v{vA2}, v{vT0}, 5, v{vA2}")
        E(f"v_and_b32 v{vT0}, 3, v{vL}"); E(f"v_lshl_add_u32 v{vA2}, v{vT0}, 3, v{vA2}")
        E(f"v_add_u32 v{vA2}, s100, v{vA2}")
        for b in range(0, 4):
            self.w2_dma(b); self.w2_read(b, vA2)
        F16C, XF, DC, AC, Y, OP, TM = 80, 88, 104, 112, 128, 144, 152
        self.const_f16(F16C, True)
        for r in range(2):
            for T in range(2):
                for h in range(2):
                    E(f"v_lshlrev_b32 v{XF+8*r+4*T+2*h}, 16, v{XC+4*r+2*T+h}")
                    E(f"v_and_b32 v{XF+8*r+4*T+2*h+1}, s{sMASK}, v{XC+4*r+2*T+h}")
        for h, dst in ((0, vA0), (1, vA1)):
            E(f"s_lshl_b32 s{t0}, s{sW}, 5"); E(f"s_add_u32 s{t0}, s{t0}, {128*h}")
            E(f"v_and_b32 v{vT0}, 31, v{vL}"); E(f"v_add_u32 v{vT0}, s{t0}, v{vT0}")
            E(f"v_sub_u32 v{vT1}, 511, v{vT0}")
            E(f"v_cmp_eq_u32 vcc, 255, v{vT0}"); E(f"v_cndmask_b32 v{vT1}, v{vT1}, 0, vcc")
            E(f"v_add_u32 v{vT0}, 1, v{vT0}")
            E(f"v_cmp_le_u32 vcc, 32, v{vL}"); E(f"v_cndmask_b32 v{vT0}, v{vT0}, v{vT1}, vcc")
            E(f"v_and_b32 v{vT1}, 1, v{vT0}"); E(f"v_lshlrev_b32 v{dst}, 10, v{vT1}")
            E(f"v_lshrrev_b32 v{vT1}, 7, v{vT0}"); E(f"v_lshl_add_u32 v{dst}, v{vT1}, 8, v{dst}")
            E(f"v_bfe_u32 v{vT1}, v{vT0}, 1, 4"); E(f"v_lshl_add_u32 v{dst}, v{vT1}, 4, v{dst}")
            E(f"v_bfe_u32 v{vT1}, v{vT0}, 5, 2"); E(f"v_lshl_add_u32 v{dst}, v{vT1}, 2, v{dst}")
            E(f"v_add_u32 v{dst}, {L_SA}, v{dst}")
        E(f"s_lshl_b32 s{t0}, s{sW}, 11"); E(f"s_add_u32 s{t0}, s{t0}, {L_SA}"); E(f"v_add_u32 v{vT2}, s{t0}, v{vL16}")
        E(f"s_lshl_b32 s{t0}, s{sW}, 18"); E(f"s_lshl_b32 s{t1}, s{sG}, 9"); E(f"s_add_u32 s{t0}, s{t0}, s{t1}")
        E(f"s_lshl_b32 s{t1}, s{sMU}, 5"); E(f"s_add_u32 s{t0}, s{t0}, s{t1}"); E(f"s_add_u32 s{t0}, s{t0}, {X2}")
        E(f"s_add_u32 s{t1}, s{t0}, {128*8192}")
        E.wait(vm="x2s")
        lds = [f"buffer_load_dwordx4 {v(DC,4)}, v{vGA}, {s(SWS,4)}, s{t0} offen sc1",
               f"buffer_load_dwordx4 {v(DC+4,4)}, v{vGA}, {s(SWS,4)}, s{t1} offen sc1"]
        for l in lds: E(l, tag="x2p")
        self.checked(lds, list(range(DC, DC+8)), "x2p")
        self.stamp("X2")
        for h, ad in ((0, vA0), (1, vA1)):
            for rho in range(4):
                E(f"ds_write_b32 v{ad}, v{DC+4*h+rho} offset:{2048*rho}", tag="c")
        E.wait(lg="c")
        E("s_barrier")
        E(f"ds_read_b128 {v(DC,4)}, v{vT2}", tag="c0"); E(f"ds_read_b128 {v(DC+4,4)}, v{vT2} offset:1024", tag="c1")
        for p in range(2):
            E.wait(lg=f"c{p}")
            self.mm16(AC+4*p, DC+4*p, F16C, True)
            self.mm16(AC+8+4*p, DC+4*p, F16C+4, True)
        for p in range(2):
            for h in (0, 2):
                self.cmul_pk(Y+4*p+h, Y+8+4*p+h, AC+4*p+h, AC+8+4*p+h, TWA+4*p+h, TWA+8+4*p+h, TM, True)
        for p in range(2):
            for part in range(2):
                for h in range(2):
                    E(f"v_cvt_pk_bf16_f32 v{OP+4*p+2*part+h}, v{Y+8*part+4*p+2*h}, v{Y+8*part+4*p+2*h+1}")
        for p in range(2):
            for T in range(2):
                self.mm16(AC+4*T, OP+4*p, self.f32w(T, p, "ir"), p == 0)
                self.mm16(AC+8+4*T, OP+4*p, self.f32w(T, p, "ii"), p == 0)
        E(f"v_lshlrev_b32 v{vT0}, 2, v{vN}"); E(f"v_add_u32 v{vT0}, v{vT0}, v{vQ}"); E(f"v_lshlrev_b32 v{vT0}, 7, v{vT0}")
        E(f"s_lshl_b32 s{t0}, s{sW}, 1"); E(f"v_and_b32 v{vT1}, 7, v{vN}"); E(f"v_xor_b32 v{vT1}, s{t0}, v{vT1}")
        E(f"v_lshl_add_u32 v{vA0}, v{vT1}, 4, v{vT0}"); E(f"v_add_u32 v{vA0}, {L_SB}, v{vA0}"); E(f"v_xor_b32 v{vA1}, 16, v{vA0}")
        E(f"v_lshrrev_b32 v{vT0}, 5, v0"); E(f"v_xor_b32 v{vT0}, v{vT0}, v0"); E(f"v_and_b32 v{vT0}, 7, v{vT0}")
        E(f"v_lshrrev_b32 v{vT1}, 3, v0"); E(f"v_lshlrev_b32 v{vT1}, 7, v{vT1}"); E(f"v_lshl_add_u32 v{vT3}, v{vT0}, 4, v{vT1}")
        E(f"v_add_u32 v{vT3}, {L_SB}, v{vT3}")
        H = AC
        for r in range(0, 16, 2):
            E(f"v_pk_add_f32 {v(H+r,2)}, {v(H+r,2)}, {v(XF+r,2)}")
        sa, qa, sb, qb, RR = Y, Y+1, Y+2, Y+3, Y+12
        for r, (S_, Q_) in enumerate(((sa, qa), (sb, qb))):
            b = H+8*r; u = Y+4+4*r
            E(f"v_pk_add_f32 {v(u,2)}, {v(b,2)}, {v(b+2,2)}"); E(f"v_pk_mul_f32 {v(u+2,2)}, {v(b,2)}, {v(b,2)}")
            E(f"v_pk_add_f32 {v(u,2)}, {v(u,2)}, {v(b+4,2)}"); E(f"v_pk_fma_f32 {v(u+2,2)}, {v(b+2,2)}, {v(b+2,2)}, {v(u+2,2)}")
            E(f"v_pk_add_f32 {v(u,2)}, {v(u,2)}, {v(b+6,2)}"); E(f"v_pk_fma_f32 {v(u+2,2)}, {v(b+4,2)}, {v(b+4,2)}, {v(u+2,2)}")
            E(f"v_add_f32 v{S_}, v{u}, v{u+1}"); E(f"v_pk_fma_f32 {v(u+2,2)}, {v(b+6,2)}, {v(b+6,2)}, {v(u+2,2)}")
            E(f"v_add_f32 v{Q_}, v{u+2}, v{u+3}")
        HBF = DC
        fill = [f"v_cvt_pk_bf16_f32 v{HBF+r}, v{H+2*r}, v{H+2*r+1}" for r in range(8)]
        self.ln_reduce(sa, qa, sb, qb, RR, fill)
        for r in range(2):
            for h in range(0, 8, 2):
                E(f"v_pk_fma_f32 {v(H+8*r+h,2)}, {v(H+8*r+h,2)}, {v(RR+2*r,2)}, {v(RR+2*r,2)} op_sel:[0,0,1] op_sel_hi:[1,0,1]")
            for h in range(4):
                E(f"v_cvt_pk_bf16_f32 v{OP+4*r+h}, v{H+8*r+2*h}, v{H+8*r+2*h+1}")
            E(f"ds_write_b128 v{vA0 if r == 0 else vA1}, {v(OP+4*r,4)}", tag="c")
        E.wait(lg="c")
        E("s_barrier")
        E(f"ds_read_b128 {v(Y,4)}, v{vT3}", tag="c0"); E(f"ds_read_b128 {v(Y+4,4)}, v{vT3} offset:4096", tag="c1")
        ln2_soff(t1, t2)
        E(f"s_add_u32 s{t2}, s{t1}, 16384")
        for r in range(2):
            E(f"v_permlane16_swap_b32 v{HBF+4*r}, v{HBF+4*r+2}"); E(f"v_permlane16_swap_b32 v{HBF+4*r+1}, v{HBF+4*r+3}")
        E.wait(lg="c0")
        E(f"buffer_store_dwordx4 {v(Y,4)}, v{vA3}, {s(SWS,4)}, s{t1} offen sc1", tag="lns")
        E.wait(lg="c1")
        E(f"buffer_store_dwordx4 {v(Y+4,4)}, v{vA3}, {s(SWS,4)}, s{t2} offen sc1", tag="lns")
        E(f"v_lshlrev_b32 v{vT0}, 6, v{vN}"); E(f"v_and_b32 v{vT1}, 1, v{vQ}"); E(f"v_lshl_add_u32 v{vT0}, v{vT1}, 5, v{vT0}")
        E(f"v_lshrrev_b32 v{vT1}, 1, v{vQ}"); E(f"v_lshl_add_u32 v{vT0}, v{vT1}, 4, v{vT0}")
        E(f"s_add_u32 s{t0}, s{t6}, {HR}")
        E(f"buffer_store_dwordx4 {v(HBF,4)}, v{vT0}, {s(SWS,4)}, s{t0} offen sc1", tag="hrs")
        E(f"buffer_store_dwordx4 {v(HBF+4,4)}, v{vT0}, {s(SWS,4)}, s{t0} offen offset:1024 sc1", tag="hrs")
        self.stamp("C_st")
        if self.stop == "C":
            return self.finish()
        ACC, LN, WFR, GT = 64, 128, 16, 40
        B1R = 16
        E(f"v_lshrrev_b32 v{vT0}, 5, v{vL}"); E(f"v_lshlrev_b32 v{vT0}, 3, v{vT0}")
        E(f"s_mul_i32 s{t0}, s{sMU}, 224")
        for g4 in range(14):
            E(f"buffer_load_dwordx2 {v(B1R+2*g4,2)}, v{vT0}, {s(SB1,4)}, s{t0} offen offset:{16*g4}", tag="b1")
        for b in range(4, 7):
            self.w2_dma(b); self.w2_read(b, vA2)
        E.wait(vm="b1")
        for g4 in range(14):
            for h in range(2):
                E(f"v_lshlrev_b32 v{ACC+4*g4+2*h}, 16, v{B1R+2*g4+h}")
                E(f"v_and_b32 v{ACC+4*g4+2*h+1}, s{sMASK}, v{B1R+2*g4+h}")
        for r in range(56, 64): E(f"v_mov_b32 v{ACC+r}, 0")
        E(f"v_lshrrev_b32 v{vT0}, 5, v{vL}"); E(f"v_mul_u32_u24 v{vT0}, 1792, v{vT0}")
        E(f"v_and_b32 v{vT1}, 3, v{vL}"); E(f"v_lshl_add_u32 v{vT0}, v{vT1}, 3, v{vT0}")
        E(f"v_bfe_u32 v{vT1}, v{vL}, 2, 2"); E(f"v_lshl_add_u32 v{vT2}, v{vT1}, 5, v{vT0}")
        E(f"v_lshl_add_u32 v{vA0}, v{vT1}, 6, v{vT0}")
        E(f"v_bfe_u32 v{vT1}, v{vL}, 4, 1"); E(f"v_lshl_add_u32 v{vA0}, v{vT1}, 5, v{vA0}")
        E(f"v_add_u32 v{vA1}, 57344, v{vA0}"); E(f"v_add_u32 v{vT3}, 57344, v{vT2}")
        E(f"s_lshl_b32 s{t0}, s{sG}, 17"); E(f"s_lshl_b32 s{t1}, s{sW}, 15"); E(f"s_add_u32 s{t0}, s{t0}, s{t1}")
        E(f"s_add_u32 s{t0}, s{t0}, {LN2}")
        for b in range(8): E(f"s_add_u32 s{40+b}, s{t0}, {4096*b}")
        E.wait(vm=["w1", "lns"])
        E("s_barrier")
        lnl = [[f"buffer_load_dwordx4 {v(LN+16*b+4*x,4)}, v{vL16}, {s(SWS,4)}, s{40+b} offen offset:{1024*x} sc1" for x in range(4)] for b in range(8)]
        for b in range(8):
            for l in lnl[b]: E(l, tag=f"ln{b}")
        def w1rd(ks, Uu, dst, tag):
            ad = (vA0, vA1)[ks >= 16] if Uu < 3 else (vT2, vT3)[ks >= 16]
            for e2 in range(2):
                E(f"ds_read_b64_tr_b16 {v(dst+2*e2,2)}, v{ad} offset:{(ks%16)*3584+e2*896+Uu*256}", tag=tag)
        def mm32(d, x, y, first=False):
            E(f"v_mfma_f32_32x32x16_bf16 {v(d,16)}, {x}, {y}, {'0' if first else v(d,16)}")
        for grp, tiles in enumerate(((0, 1, 2), (3,))):
            for ti, Uu in enumerate(tiles): w1rd(0, Uu, WFR+4*ti, "k0")
            for ks in range(32):
                if grp == 0 and ks % 4 == 0:
                    b = ks//4
                    self.checked(lnl[b], list(range(LN+16*b, LN+16*b+16)), f"ln{b}", tmp=GT)
                    if b == 0: self.stamp("LN")
                if ks < 31:
                    for ti, Uu in enumerate(tiles): w1rd(ks+1, Uu, WFR+12*((ks+1) & 1)+4*ti, f"k{ks+1}")
                E.wait(lg=f"k{ks}")
                for ti, Uu in enumerate(tiles):
                    mm32(ACC+16*Uu, v(WFR+12*(ks & 1)+4*ti, 4), v(LN+4*ks, 4))
        self.stamp("G1mm")
        E(f"s_lshl_b32 s{t0}, s{sG}, 2"); E(f"s_add_u32 s{t0}, s{t0}, s{sW}"); E(f"s_lshl_b32 s{t0}, s{t0}, 4")
        E(f"s_add_u32 s{t0}, s{t0}, s{sMU}"); E(f"s_mul_i32 s{t0}, s{t0}, 7168"); E(f"s_add_u32 s{t0}, s{t0}, {HB}")
        E(f"s_add_u32 s{t1}, s{t0}, 4096")
        k2 = -2.0*math.sqrt(2.0/math.pi)*math.log2(math.e); k1 = k2*0.044715
        E(f"s_mov_b32 s{t2}, {lit(k1)}"); E(f"s_mov_b32 s{t3}, {lit(k1)}")
        E(f"v_mov_b32 v{GT+16}, {lit(k2)}"); E(f"v_mov_b32 v{GT+17}, {lit(k2)}")
        for u in range(7):
            b = ACC+8*u
            for h in range(0, 8, 2):
                E(f"v_pk_mul_f32 {v(GT+h,2)}, {v(b+h,2)}, {v(b+h,2)}")
            for h in range(0, 8, 2):
                E(f"v_pk_fma_f32 {v(GT+h,2)}, {v(GT+h,2)}, s[{t2}:{t2+1}], {v(GT+16,2)}")
            for h in range(0, 8, 2):
                E(f"v_pk_mul_f32 {v(GT+h,2)}, {v(GT+h,2)}, {v(b+h,2)}")
            for h in range(8): E(f"v_exp_f32 v{GT+h}, v{GT+h}")
            for h in range(0, 8, 2):
                E(f"v_pk_add_f32 {v(GT+h,2)}, {v(GT+h,2)}, 1.0 op_sel_hi:[1,0]")
            for h in range(8): E(f"v_rcp_f32 v{GT+h}, v{GT+h}")
            for h in range(0, 8, 2):
                E(f"v_pk_mul_f32 {v(GT+h,2)}, {v(GT+h,2)}, {v(b+h,2)}")
            o_ = GT+8+4*(u & 1)
            for h in range(4): E(f"v_cvt_pk_bf16_f32 v{o_+h}, v{GT+2*h}, v{GT+2*h+1}")
            E(f"buffer_store_dwordx4 {v(o_,4)}, v{vL16}, {s(SWS,4)}, s{t0 if u < 4 else t1} offen offset:{1024*(u%4)} sc1", tag="hs")
        self.stamp("G1_st")
        E(f"s_lshl_b32 s{t0}, s{sP}, 2"); E(f"s_add_u32 s{t0}, s{t0}, s{sW}"); E(f"s_lshl_b32 s{t0}, s{t0}, 6")
        E(f"s_add_u32 s{t0}, s{t0}, {F2}")
        E(f"v_mov_b32 v{vT0}, {hex(OOB)}"); E(f"v_mov_b32 v{vT1}, s{t0}")
        E(f"v_cmp_eq_u32 vcc, 0, v{vL}"); E(f"v_cndmask_b32 v{vT0}, v{vT0}, v{vT1}, vcc")
        E(f"v_mov_b32 v{vT1}, s{sTOK}")
        E.wait(vm=["hs", "hrs"])
        E(f"buffer_store_dword v{vT1}, v{vT0}, {s(SWS,4)}, 0 offen sc1", tag="f2s")
        if self.stop == "G1":
            return self.finish()
        E(f"s_lshl_b32 s{t0}, s{sG}, 12"); E(f"s_add_u32 s{t0}, s{t0}, {F2}")
        E(f"v_lshlrev_b32 v{vA0}, 6, v{vL}")
        f2load = f"buffer_load_dword v{GT}, v{vA0}, {s(SWS,4)}, s{t0} offen sc1"
        E(f"v_lshrrev_b32 v{vT0}, 4, v{vL}"); E(f"v_lshlrev_b32 v{vA1}, 15, v{vT0}")
        E(f"v_bfe_u32 v{vT0}, v{vL}, 3, 1"); E(f"v_lshl_add_u32 v{vA1}, v{vT0}, 10, v{vA1}")
        E(f"v_and_b32 v{vT0}, 7, v{vL}"); E(f"v_lshlrev_b32 v{vT1}, 4, v{vT0}"); E(f"v_add_u32 v{vA1}, v{vA1}, v{vT1}")
        E(f"s_lshl_b32 s46, s{sG}, 7"); E(f"s_lshr_b32 s{t1}, s{sMU}, 3"); E(f"s_lshl_b32 s{t1}, s{t1}, 4"); E(f"s_add_u32 s46, s46, s{t1}")
        E(f"s_lshl_b32 s{t1}, s{sW}, 1"); E(f"s_add_u32 s46, s46, s{t1}"); E(f"s_lshl_b32 s46, s46, 10")
        E(f"s_and_b32 s{t1}, s{sMU}, 7"); E(f"s_lshl_b32 s47, s{t1}, 7"); E(f"s_add_u32 s46, s46, s47")
        E(f"s_add_u32 s48, s46, {8*1024}"); E(f"s_add_u32 s49, s46, {HR}"); E(f"s_add_u32 s50, s48, {HR}")
        E(f"s_lshl_b32 s{t1}, s{sG}, 2"); E(f"s_lshr_b32 s{t2}, s{sMU}, 3"); E(f"s_lshl_b32 s{t2}, s{t2}, 1"); E(f"s_add_u32 s{t1}, s{t1}, s{t2}")
        E(f"s_lshl_b32 s{t1}, s{t1}, 4"); E(f"s_lshl_b32 s{t2}, s{sW}, 2"); E(f"s_add_u32 s{t1}, s{t1}, s{t2}")
        E(f"s_mul_i32 s{t1}, s{t1}, 7168"); E(f"s_add_u32 s52, s{t1}, {HB}"); E(f"s_add_u32 s53, s52, {16*7168}")
        E(f2load, tag="f2p")
        self.checked([f2load], [GT], "f2p", ref=sTOK)
        self.stamp("F2")
        HF = 128; EPI = 16
        def hload(li):
            tau, ks = divmod(li, 28)
            E(f"s_add_u32 s{t2}, s{52+tau}, {(ks//4)*4096}") if ks % 4 == 0 else None
            E(f"buffer_load_dwordx4 {v(HF+4*(li%32),4)}, v{vL16}, {s(SWS,4)}, s{t2} offen offset:{1024*(ks%4)} sc1", tag=f"h{li}")
        for li in range(32): hload(li)
        E(f"buffer_load_dwordx4 {v(EPI,4)}, v{vA1}, {s(SWS,4)}, s49 offen sc1", tag="epi")
        E(f"buffer_load_dwordx4 {v(EPI+4,4)}, v{vA1}, {s(SWS,4)}, s50 offen sc1", tag="epi")
        E(f"buffer_load_dwordx4 {v(EPI+8,4)}, v{vT1}, {s(SB2,4)}, s47 offen", tag="epi")
        E(f"v_and_b32 v{vT2}, 31, v{vL}"); E(f"v_lshrrev_b32 v{vT3}, 5, v{vL}"); E(f"v_xor_b32 v{vT3}, v{vT3}, v{vT2}")
        E(f"v_and_b32 v{vT3}, 7, v{vT3}"); E(f"v_lshlrev_b32 v{vT3}, 4, v{vT3}"); E(f"v_lshl_add_u32 v{vT2}, v{vT2}, 8, v{vT3}")
        E(f"s_lshl_b32 s{t3}, s{sW}, 13"); E(f"v_add_u32 v{vT2}, s{t3}, v{vT2}")
        WA = 28
        for x in range(4): E(f"v_xor_b32 v{WA+x}, {32*x}, v{vT2}")
        E(f"v_lshrrev_b32 v{vT2}, 3, v{vL}"); E(f"v_lshlrev_b32 v{vT3}, 1, v{vT0}"); E(f"v_xor_b32 v{vT3}, v{vT3}, v{vT2}")
        E(f"v_lshlrev_b32 v{vT3}, 4, v{vT3}"); E(f"v_lshl_add_u32 v{vT3}, v{vT2}, 8, v{vT3}")
        E(f"s_lshl_b32 s{t3}, s{sW}, 11"); E(f"v_add_u32 v{WA+4}, s{t3}, v{vT3}"); E(f"v_xor_b32 v{WA+5}, 16, v{WA+4}")
        for x in range(6): E(f"v_add_u32 v{WA+6+x}, {L_ST}, v{WA+x}")
        for li in range(56):
            tau, ks = divmod(li, 28)
            E.wait(vm=f"h{li}")
            for V in range(2):
                mm32(ACC+32*tau+16*V, a((ks*2+V)*4, 4), v(HF+4*(li % 32), 4), ks == 0)
            if li + 32 < 56: hload(li+32)
        self.stamp("G2mm")
        RD = 128
        for tau in range(2):
            wa = WA+6 if tau == 0 else WA
            for V in range(2):
                for a4 in range(4):
                    E(f"ds_write_b128 v{wa+a4}, {v(ACC+32*tau+16*V+4*a4,4)} offset:{128*V}", tag="r")
        E.wait(lg="r")
        E("s_barrier")
        E.wait(vm="epi")
        B2F = 40
        for r in range(4):
            E(f"v_lshlrev_b32 v{B2F+2*r}, 16, v{EPI+8+r}"); E(f"v_and_b32 v{B2F+2*r+1}, s{sMASK}, v{EPI+8+r}")
        for tau in range(2):
            ra = WA+10 if tau == 0 else WA+4
            for src in range(4):
                for x in range(2):
                    E(f"ds_read_b128 {v(RD+32*tau+8*src+4*x,4)}, v{ra+x} offset:{8192*src}", tag=f"r{tau}{src}")
        for tau in range(2):
            HX = 48
            for r in range(4):
                E(f"v_lshlrev_b32 v{HX+2*r}, 16, v{EPI+4*tau+r}"); E(f"v_and_b32 v{HX+2*r+1}, s{sMASK}, v{EPI+4*tau+r}")
            for h in range(0, 8, 2): E(f"v_pk_add_f32 {v(HX+h,2)}, {v(HX+h,2)}, {v(B2F+h,2)}")
            for src in range(4):
                E.wait(lg=f"r{tau}{src}")
                for h in range(0, 8, 2): E(f"v_pk_add_f32 {v(HX+h,2)}, {v(HX+h,2)}, {v(RD+32*tau+8*src+h,2)}")
            for r in range(4): E(f"v_cvt_pk_bf16_f32 v{56+4*tau+r}, v{HX+2*r}, v{HX+2*r+1}")
            E(f"buffer_store_dwordx4 {v(56+4*tau,4)}, v{vA1}, {s(SOUT,4)}, s{46 if tau == 0 else 48} offen", tag="out")
        return self.finish()
    def finish(self):
        E = self.E
        if self.prof:
            E.wait(vm="all")
            self.stamp("end")
            E(f"v_mov_b32 v{vT0}, 0")
            for i in range(self.nstamp): E(f"v_writelane_b32 v{vT0}, s{84+i}, {i}")
            E(f"s_lshl_b32 s{t0}, s2, 2"); E(f"s_add_u32 s{t0}, s{t0}, s{sW}"); E(f"s_lshl_b32 s{t0}, s{t0}, 8")
            E(f"s_add_u32 s{t0}, s{t0}, {PROF}")
            E(f"v_lshlrev_b32 v{vT1}, 2, v{vL}")
            E(f"buffer_store_dword v{vT0}, v{vT1}, {s(SWS,4)}, s{t0} offen")
            if self.o.get("dbg") is not None:
                self.srd(SX, KA+18, 256)
                E(f"v_subrev_u32 v{vT0}, s84, v{vT0}")
                E(f"v_lshlrev_b32 v{vT1}, 2, v0")
                E(f"v_mov_b32 v{vT2}, {hex(OOB)}")
                E(f"v_cmp_gt_u32 vcc, 16, v0")
                E(f"s_cmp_eq_u32 s2, {self.o['dbg']}")
                E(f"s_cselect_b64 vcc, vcc, 0")
                E(f"v_cndmask_b32 v{vT1}, v{vT2}, v{vT1}, vcc")
                E(f"buffer_store_dword v{vT0}, v{vT1}, {s(SX,4)}, 0 offen")
        if self.prof and self.o.get("amp") is not None:
            i = self.o["amp"]; i0 = self.o.get("amp0", 0)
            if i < 0: i = self.nstamp - 1
            E(f"s_cmp_lg_u32 s2, 0"); E("s_cbranch_scc1 L_end")
            E(f"s_sub_u32 s{t0}, s{84+i}, s{84+i0}"); E(f"s_min_u32 s{t0}, s{t0}, 20000"); E(f"s_mul_i32 s{t0}, s{t0}, 10")
            E(f"s_mov_b32 s{t2}, 1000000")
            E.label("L_amp")
            E(f"s_memrealtime s[{sSTAMP}:{sSTAMP+1}]"); E("s_waitcnt lgkmcnt(0)")
            E(f"s_sub_u32 s{t1}, s{sSTAMP}, s{84+self.nstamp-1}")
            E(f"s_sub_u32 s{t2}, s{t2}, 1"); E("s_cbranch_scc1 L_end")
            E(f"s_cmp_lt_u32 s{t1}, s{t0}"); E("s_cbranch_scc1 L_amp")
        E.wait(vm="all", lg="all")
        E.label("L_end")
        E("s_endpgm")
        hdr = f"; @launch grid=(256,1,1) block=(256,1,1) lds={L_END}\n"
        hdr += '.amdgcn_target "amdgcn-amd-amdhsa--gfx950"\n.text\n'
        hdr += f".globl {KNAME}\n.p2align 8\n.type {KNAME},@function\n{KNAME}:\n"
        desc = f""".section .rodata,"a"
.p2align 6
.amdhsa_kernel {KNAME}
  .amdhsa_next_free_vgpr 512
  .amdhsa_next_free_sgpr 102
  .amdhsa_accum_offset 256
  .amdhsa_group_segment_fixed_size 0
  .amdhsa_kernarg_size 88
  .amdhsa_user_sgpr_count 2
  .amdhsa_user_sgpr_kernarg_segment_ptr 1
  .amdhsa_system_sgpr_workgroup_id_x 1
  .amdhsa_float_denorm_mode_32 3
.end_amdhsa_kernel
"""
        return hdr + E.text() + desc

if __name__ == "__main__":
    import argparse
    ap = argparse.ArgumentParser()
    ap.add_argument("-o", default="sequential_preLN__spectral_gfnet__mixer_channel_mlp__prompt.s")
    ap.add_argument("--prof", action="store_true")
    ap.add_argument("--stop", default=None)
    ap.add_argument("--opt", action="append", default=[])
    args = ap.parse_args()
    opts = {}
    for x in args.opt:
        kk, vv = x.split("=")
        opts[kk] = int(vv) if vv.lstrip("-").isdigit() else vv
    k = K(prof=args.prof, stop=args.stop, opts=opts)
    txt = k.build()
    open(args.o, "w").write(txt)
    if args.prof: open(args.o + ".names", "w").write(" ".join(k.names))
    print("wrote", args.o, len(txt), "bytes; nops inserted:", k.E.nnop)
```

```python
import sys, math
from emit import Emit, v, a, s
KNAME = "sequential_preLN__spectral_gfnet__mixer_channel_mlp__prompt_kernel"
MB = 1 << 20
X1, X2, WT, LN2, HR, HB = 0, 2*MB, 4*MB, 6*MB, 8*MB, 10*MB
F1 = 18*MB; F2 = F1 + 16384; EP = F1 + 131072; PROF = 19*MB; WS_SIZE = 20*MB
L_W1, L_ST, L_SA, L_SB, L_END = 0, 114688, 147456, 155648, 163840
SX, SWS, SW1, SW2, SOUT, SWR, SWI, SB1, SB2 = 4, 8, 12, 16, 20, 24, 28, 32, 36
KA = 40
sJ, sT, sG, sMU, sP, sW, sTOK, sTO = 62, 63, 64, 65, 66, 67, 68, 69
t0, t1, t2, t3, t4, t5, t6, t7 = 70, 71, 72, 73, 74, 75, 76, 77
sMASK, sONES = 78, 79
sSTAMP = 82
vTID, vL, vN, vQ = 0, 1, 2, 3
vGA, vL16, vA0, vA1, vA2, vA3, vA4, vA5, vT0, vT1, vT2, vT3 = 4, 5, 6, 7, 8, 9, 10, 11, 12, 13, 14, 15
F32 = 16
TWA = 56
XC = 72
OOB = 0x7ffffff0

def f32bits(x):
    import struct
    return struct.unpack("<I", struct.pack("<f", x))[0]
def lit(x): return hex(f32bits(x))

class K:
    def __init__(self, prof=False, stop=None, opts=None):
        self.E = Emit(); self.prof = prof; self.stop = stop; self.nstamp = 0; self.names = []
        self.o = dict(opts or {})
    def stamp(self, name):
        if not self.prof: return
        E = self.E
        assert self.nstamp < 16
        E(f"s_memrealtime s[{sSTAMP}:{sSTAMP+1}]")
        E("s_waitcnt lgkmcnt(0)")
        E(f"s_mov_b32 s{84+self.nstamp}, s{sSTAMP}")
        self.names.append(name); self.nstamp += 1
    def srd(self, dst, base, nbytes):
        E = self.E
        E(f"s_mov_b32 s{dst}, s{base}"); E(f"s_mov_b32 s{dst+1}, s{base+1}")
        E(f"s_mov_b32 s{dst+2}, {hex(nbytes)}"); E(f"s_mov_b32 s{dst+3}, 0x00020000")
    def checked(self, loads, regs, tag, tmp=vT0, ref=None):
        E = self.E
        lr, lc = E.newlabel("L_retry"), E.newlabel("L_cont")
        def test(emit):
            if ref is None:
                R = list(regs)
                if len(R) == 1: emit(f"v_cmp_eq_u32 vcc, -1, v{R[0]}"); return
                emit(f"v_max3_u32 v{tmp}, v{R[0]}, v{R[1]}, v{R[2] if len(R) > 2 else R[1]}"); R = R[3:]
                while R:
                    emit(f"v_max3_u32 v{tmp}, v{tmp}, v{R[0]}, v{R[1] if len(R) > 1 else R[0]}"); R = R[2:]
                emit(f"v_cmp_eq_u32 vcc, -1, v{tmp}")
            else:
                emit(f"v_cmp_ne_u32 vcc, s{ref}, v{regs[0]}")
        E.wait(vm=tag)
        test(E)
        E(f"s_cbranch_vccnz {lr}")
        E.label(lc)
        o = [f"{lr}:", "    s_nop 7", "    s_nop 7", f"    s_sub_u32 s{sTO}, s{sTO}, 1", f"    s_cbranch_scc1 {lr}_to"]
        o += ["    " + l for l in loads]
        o += ["    s_waitcnt vmcnt(0)"]
        test(lambda t: o.append("    " + t))
        o += [f"    s_cbranch_vccnz {lr}", "    s_nop 7", f"    s_branch {lc}",
              f"{lr}_to:", f"    s_mov_b32 s{sTO}, 0", "    s_nop 7", f"    s_branch {lc}"]
        E.ool += o
    def sincos(self, ang, c, sn, tmp):
        E = self.E
        E(f"v_fract_f32 v{tmp}, v{ang}")
        E(f"v_cos_f32 v{c}, v{tmp}")
        E(f"v_sin_f32 v{sn}, v{tmp}")
    def cmul_pk(self, dr, di, xr, xi, c, sn, t, conj):
        E = self.E
        E(f"v_pk_mul_f32 {v(t,2)}, {v(xi,2)}, {v(sn,2)}")
        E(f"v_pk_mul_f32 {v(t+2,2)}, {v(xr,2)}, {v(sn,2)}")
        n = " neg_lo:[0,0,1] neg_hi:[0,0,1]"
        E(f"v_pk_fma_f32 {v(dr,2)}, {v(xr,2)}, {v(c,2)}, {v(t,2)}" + (n if conj else ""))
        E(f"v_pk_fma_f32 {v(di,2)}, {v(xi,2)}, {v(c,2)}, {v(t+2,2)}" + ("" if conj else n))
    def ln_reduce(self, sa, qa, sb, qb, R, fill=()):
        E = self.E; fill = list(fill)
        def f(n=1):
            for _ in range(n):
                if fill: E(fill.pop(0))
        f(2)
        E(f"v_permlane32_swap_b32 v{sa}, v{sb}")
        E(f"v_permlane32_swap_b32 v{qa}, v{qb}")
        E(f"v_add_f32 v{sa}, v{sa}, v{sb}")
        E(f"v_add_f32 v{qa}, v{qa}, v{qb}")
        f(2)
        E(f"v_permlane16_swap_b32 v{sa}, v{qa}")
        E(f"v_add_f32 v{sa}, v{sa}, v{qa}")
        for r in (8, 4, 2, 1):
            f(2)
            E(f"v_add_f32_dpp v{sa}, v{sa}, v{sa} row_ror:{r} row_mask:0xf bank_mask:0xf")
        E(f"v_mov_b32 v{qa}, v{sa}")
        f(2)
        E(f"v_permlane16_swap_b32 v{sa}, v{qa}")
        E(f"v_mul_f32 v{sa}, {lit(1/512)}, v{sa}")
        E(f"v_mul_f32 v{sb}, v{sa}, v{sa}")
        E(f"v_fma_f32 v{qa}, v{qa}, s{t7}, -v{sb}")
        E(f"v_max_f32 v{qa}, 0, v{qa}")
        E(f"v_add_f32 v{qa}, {lit(1e-5)}, v{qa}")
        E(f"v_rsq_f32 v{R}, v{qa}")
        f(1)
        E(f"v_mul_f32 v{R+1}, v{sa}, v{R}")
        E(f"v_sub_f32 v{R+1}, 0, v{R+1}")
        E(f"v_mov_b32 v{R+2}, v{R}")
        E(f"v_mov_b32 v{R+3}, v{R+1}")
        f(2)
        E(f"v_permlane32_swap_b32 v{R}, v{R+2}")
        E(f"v_permlane32_swap_b32 v{R+1}, v{R+3}")
        f(len(fill))
    def mm16(self, d, x, y, first):
        self.E(f"v_mfma_f32_16x16x32_bf16 {v(d,4)}, {v(x,4)}, {v(y,4)}, {'0' if first else v(d,4)}")
    def f32w(self, T, p, win):
        return F32 + (T*2+p)*10 + {"fi": 0, "fr": 2, "ii": 4, "ir": 6}[win]
    def const_f32(self):
        E = self.E; c = 200; sn = 204; ang = 208; tmp = 209; st = 210
        for T in range(2):
            E(f"v_lshlrev_b32 v{st}, 1, v{vN}")
            if T: E(f"v_add_u32 v{st}, 1, v{st}")
            E(f"v_cvt_f32_u32 v{st}, v{st}")
            E(f"v_mul_f32 v{st}, {lit(1/32)}, v{st}")
            for p in range(2):
                E(f"v_lshlrev_b32 v{ang}, 3, v{vQ}")
                if p: E(f"v_add_u32 v{ang}, 1, v{ang}")
                E(f"v_cvt_f32_u32 v{ang}, v{ang}")
                E(f"v_mul_f32 v{ang}, v{ang}, v{st}")
                for i in range(4):
                    if i: E(f"v_fma_f32 v{ang}, v{st}, 2.0, v{ang}")
                    self.sincos(ang, c+i, sn+i, tmp)
                b = F32 + (T*2+p)*10
                E(f"v_cvt_pk_bf16_f32 v{b+2}, v{c}, v{c+1}")
                E(f"v_cvt_pk_bf16_f32 v{b+3}, v{c+2}, v{c+3}")
                E(f"v_cvt_pk_bf16_f32 v{b+4}, v{sn}, v{sn+1}")
                E(f"v_cvt_pk_bf16_f32 v{b+5}, v{sn+2}, v{sn+3}")
                E(f"v_cvt_pk_bf16_f32 v{b+0}, -v{sn}, -v{sn+1}")
                E(f"v_cvt_pk_bf16_f32 v{b+1}, -v{sn+2}, -v{sn+3}")
                E(f"v_mov_b64 {v(b+6,2)}, {v(b+2,2)}")
                E(f"v_mov_b64 {v(b+8,2)}, {v(b+0,2)}")
    def const_twa(self):
        E = self.E; st = 210; ang = 208; tmp = 209
        E(f"v_cvt_f32_u32 v{st}, v{vN}")
        E(f"v_mul_f32 v{st}, {lit(1/512)}, v{st}")
        for p in range(2):
            E(f"v_lshlrev_b32 v{ang}, 3, v{vQ}")
            if p: E(f"v_add_u32 v{ang}, 1, v{ang}")
            E(f"v_cvt_f32_u32 v{ang}, v{ang}")
            E(f"v_mul_f32 v{ang}, v{ang}, v{st}")
            for i in range(4):
                if i: E(f"v_fma_f32 v{ang}, v{st}, 2.0, v{ang}")
                self.sincos(ang, TWA+4*p+i, TWA+8+4*p+i, tmp)
    def const_f16(self, dst, interleaved):
        E = self.E; c = 200; sn = 204; ang = 208; tmp = 209; st = 210
        E(f"v_cvt_f32_u32 v{st}, v{vN}")
        E(f"v_mul_f32 v{st}, {lit(1/16)}, v{st}")
        E(f"v_lshlrev_b32 v{ang}, 2, v{vQ}")
        E(f"v_cvt_f32_u32 v{ang}, v{ang}")
        E(f"v_mul_f32 v{ang}, v{ang}, v{st}")
        for i in range(4):
            if i: E(f"v_add_f32 v{ang}, v{ang}, v{st}")
            self.sincos(ang, c+i, sn+i, tmp)
        if not interleaved:
            E(f"v_cvt_pk_bf16_f32 v{dst+2}, v{c}, v{c+1}")
            E(f"v_cvt_pk_bf16_f32 v{dst+3}, v{c+2}, v{c+3}")
            E(f"v_cvt_pk_bf16_f32 v{dst+4}, v{sn}, v{sn+1}")
            E(f"v_cvt_pk_bf16_f32 v{dst+5}, v{sn+2}, v{sn+3}")
            E(f"v_cvt_pk_bf16_f32 v{dst+0}, -v{sn}, -v{sn+1}")
            E(f"v_cvt_pk_bf16_f32 v{dst+1}, -v{sn+2}, -v{sn+3}")
        else:
            for i in range(4):
                E(f"v_cvt_pk_bf16_f32 v{dst+i}, v{c+i}, -v{sn+i}")
                E(f"v_cvt_pk_bf16_f32 v{dst+4+i}, v{sn+i}, v{c+i}")
    def const_f64(self, dst):
        E = self.E; c = 240; sn = 241; ang = 242; tmp = 243; st = 244; a0 = 245
        E(f"s_lshl_b32 s{t0}, s{sW}, 4")
        E(f"v_add_u32 v{st}, s{t0}, v{vN}")
        E(f"v_cvt_f32_u32 v{st}, v{st}")
        E(f"v_mul_f32 v{st}, {lit(1/64)}, v{st}")
        E(f"v_lshlrev_b32 v{a0}, 2, v{vQ}")
        E(f"v_cvt_f32_u32 v{a0}, v{a0}")
        for j in range(4):
            if j: E(f"v_add_f32 v{a0}, {lit(16.0)}, v{a0}")
            E(f"v_mul_f32 v{ang}, v{a0}, v{st}")
            for i in range(4):
                if i: E(f"v_add_f32 v{ang}, v{ang}, v{st}")
                self.sincos(ang, c, sn, tmp)
                b = dst + 16*j + i
                E(f"v_cvt_pk_bf16_f32 v{b+0}, v{c}, v{sn}")
                E(f"v_cvt_pk_bf16_f32 v{b+4}, -v{sn}, v{c}")
                E(f"v_cvt_pk_bf16_f32 v{b+8}, v{c}, -v{sn}")
                E(f"v_cvt_pk_bf16_f32 v{b+12}, v{sn}, v{c}")
    def const_twb(self, fw, iv):
        E = self.E; ang = 242; tmp = 243; st = 244; a0 = 245
        E(f"s_lshl_b32 s{t0}, s{sW}, 4")
        E(f"v_add_u32 v{st}, s{t0}, v{vN}")
        E(f"v_cvt_f32_u32 v{st}, v{st}")
        E(f"v_mul_f32 v{st}, {lit(1/2048)}, v{st}")
        E(f"v_lshlrev_b32 v{a0}, 3, v{vQ}")
        E(f"v_cvt_f32_u32 v{a0}, v{a0}")
        E(f"v_mul_f32 v{ang}, v{a0}, v{st}")
        for i in range(4):
            for p in range(2):
                if i or p: E(f"v_add_f32 v{ang}, v{ang}, v{st}")
                self.sincos(ang, fw+8*p+i, fw+8*p+4+i, tmp)
        for r in range(0, 16, 2):
            E(f"v_pk_mul_f32 {v(fw+r,2)}, {v(fw+r,2)}, s[{t4}:{t4+1}]")
        E(f"v_lshlrev_b32 v{a0}, 2, v{vQ}")
        E(f"v_add_u32 v{a0}, s{t0}, v{a0}")
        E(f"v_cvt_f32_u32 v{a0}, v{a0}")
        E(f"v_mul_f32 v{a0}, {lit(1/2048)}, v{a0}")
        E(f"v_lshlrev_b32 v{st}, 1, v{vN}")
        E(f"v_cvt_f32_u32 v{st}, v{st}")
        for i in range(4):
            if i: E(f"v_add_f32 v{a0}, {lit(1/2048)}, v{a0}")
            E(f"v_mul_f32 v{ang}, v{a0}, v{st}")
            self.sincos(ang, iv+i, iv+4+i, tmp)
            E(f"v_add_f32 v{ang}, v{ang}, v{a0}")
            self.sincos(ang, iv+8+i, iv+12+i, tmp)
        for r in range(0, 16, 2):
            E(f"v_pk_mul_f32 {v(iv+r,2)}, {v(iv+r,2)}, s[{t2}:{t2+1}]")
    def w1_dma(self, units):
        E = self.E
        E("s_bfm_b64 exec, 56, 0")
        for u in units:
            gl, e2 = u >> 1, u & 1
            n, q = gl >> 2, gl & 3
            E(f"s_add_u32 m0, s80, {u*896}")
            E(f"s_add_u32 s{t0}, s81, {(32*n+16*e2+4*q)*3584}")
            E(f"buffer_load_dwordx4 v{vA4}, {s(SW1,4)}, s{t0} offen lds", tag="w1")
        E("s_mov_b64 exec, -1")
    def w2_dma(self, b):
        E = self.E
        for x in range(8):
            E(f"s_add_u32 m0, s100, {x*1024}")
            E(f"s_add_u32 s{t0}, s101, {(64*b+8*x)*1024}")
            E(f"buffer_load_dwordx4 v{vA5}, {s(SW2,4)}, s{t0} offen lds", tag=f"w2_{b}")
    def w2_read(self, b, addr):
        E = self.E
        E.wait(vm=f"w2_{b}")
        for ksl in range(4):
            for V in range(2):
                for e2 in range(2):
                    d = ((4*b+ksl)*2+V)*4 + 2*e2
                    E(f"ds_read_b64_tr_b16 {a(d,2)}, v{addr} offset:{ksl*2048+e2*1024+V*256}", tag="w2r")
        E.wait(lg="w2r")
    def build(self):
        E = self.E; o = self.o
        E("s_cmp_ge_u32 s2, 256")
        E("s_cbranch_scc1 L_end")
        E(f"s_load_dwordx16 s[{KA}:{KA+15}], s[0:1], 0")
        E(f"s_load_dwordx4 s[{KA+16}:{KA+19}], s[0:1], 64")
        E(f"s_load_dwordx2 s[{KA+20}:{KA+21}], s[0:1], 80")
        if self.prof:
            E(f"s_memrealtime s[{sSTAMP}:{sSTAMP+1}]")
        E(f"v_lshrrev_b32 v{vT0}, 6, v0")
        E(f"v_and_b32 v{vL}, 63, v0")
        E(f"v_readfirstlane_b32 s{sW}, v{vT0}")
        E(f"v_and_b32 v{vN}, 15, v0")
        E(f"v_lshrrev_b32 v{vQ}, 4, v{vL}")
        E(f"s_and_b32 s{sJ}, s2, 7"); E(f"s_lshr_b32 s{sT}, s2, 3")
        E(f"s_lshl_b32 s{sP}, s{sJ}, 5"); E(f"s_add_u32 s{sP}, s{sP}, s{sT}")
        E(f"s_lshr_b32 s{sG}, s{sP}, 4"); E(f"s_and_b32 s{sMU}, s{sP}, 15")
        E(f"s_mov_b32 s{sTO}, 200000")
        E(f"s_mov_b32 s{sMASK}, 0xffff0000"); E(f"s_mov_b32 s{sONES}, 0x3f803f80")
        E(f"s_mov_b32 s{t7}, {lit(1/512)}")
        E(f"v_lshlrev_b32 v{vL16}, 4, v{vL}")
        E(f"v_and_b32 v{vT0}, 31, v{vL}"); E(f"v_lshrrev_b32 v{vT1}, 5, v{vL}")
        E(f"v_lshlrev_b32 v{vGA}, 13, v{vT0}"); E(f"v_lshl_add_u32 v{vGA}, v{vT1}, 4, v{vGA}")
        E(f"v_lshlrev_b32 v{vA0}, 8, v{vQ}"); E(f"v_lshl_add_u32 v{vA0}, v{vN}, 2, v{vA0}")
        E(f"s_lshl_b32 s{t0}, s{sG}, 7"); E(f"s_lshl_b32 s{t1}, s{sW}, 5"); E(f"s_add_u32 s{t0}, s{t0}, s{t1}")
        E(f"s_lshl_b32 s{t1}, s{sMU}, 1"); E(f"s_add_u32 s{t0}, s{t0}, s{t1}"); E(f"s_lshl_b32 s{t6}, s{t0}, 10")
        F16A = 80
        self.const_f16(F16A, False)
        self.const_twa()
        E("s_waitcnt lgkmcnt(0)")
        if self.prof:
            E(f"s_mov_b32 s84, s{sSTAMP}"); self.names.append("start"); self.nstamp = 1
        self.stamp("karg")
        self.srd(SX, KA+0, 2097152)
        XR = 86
        for r in range(2):
            for i in range(4):
                E(f"buffer_load_dword v{XR+4*r+i}, v{vA0}, {s(SX,4)}, s{t6} offen offset:{1024*r+64*i}", tag="x")
        self.srd(SWS, KA+20, WS_SIZE)
        CL = 96
        for r in range(4): E(f"v_mov_b32 v{CL+r}, -1")
        E(f"v_lshlrev_b32 v{vA1}, 4, v0")
        E(f"s_lshl_b32 s{t0}, s{sP}, 13")
        E(f"buffer_store_dwordx4 {v(CL,4)}, v{vA1}, {s(SWS,4)}, s{t0} offen sc1", tag="clr")
        E(f"s_add_u32 s{t1}, s{t0}, 4096")
        E(f"buffer_store_dwordx4 {v(CL,4)}, v{vA1}, {s(SWS,4)}, s{t1} offen sc1", tag="clr")
        E(f"v_bfe_u32 v{vT0}, v{vL}, 4, 1"); E(f"v_lshlrev_b32 v{vA2}, 9, v{vT0}")
        E(f"v_lshl_add_u32 v{vA2}, v{vN}, 5, v{vA2}")
        E(f"v_lshrrev_b32 v{vT0}, 5, v{vL}"); E(f"v_lshl_add_u32 v{vA2}, v{vT0}, 4, v{vA2}")
        E(f"s_lshl_b32 s{t1}, s{sW}, 11"); E(f"s_add_u32 s{t1}, s{t1}, s{t0}"); E(f"s_add_u32 s{t1}, s{t1}, {X2}")
        E(f"buffer_store_dwordx4 {v(CL,4)}, v{vA2}, {s(SWS,4)}, s{t1} offen sc1", tag="clr")
        E(f"buffer_store_dwordx4 {v(CL,4)}, v{vA2}, {s(SWS,4)}, s{t1} offen offset:1024 sc1", tag="clr")
        E(f"v_lshrrev_b32 v{vT0}, 3, v0"); E(f"v_lshlrev_b32 v{vA3}, 13, v{vT0}")
        E(f"v_and_b32 v{vT0}, 7, v0"); E(f"v_lshl_add_u32 v{vA3}, v{vT0}, 4, v{vA3}")
        def wt_soff(d, tmp):
            E(f"s_lshr_b32 s{d}, s{sP}, 2"); E(f"s_lshl_b32 s{d}, s{d}, 7")
            E(f"s_and_b32 s{tmp}, s{sP}, 3"); E(f"s_lshl_b32 s{tmp}, s{tmp}, 19")
            E(f"s_add_u32 s{d}, s{d}, s{tmp}"); E(f"s_add_u32 s{d}, s{d}, {WT}")
        wt_soff(t1, t2)
        E(f"buffer_store_dwordx4 {v(CL,4)}, v{vA3}, {s(SWS,4)}, s{t1} offen sc1", tag="clr")
        E(f"s_add_u32 s{t1}, s{t1}, {32*8192}")
        E(f"buffer_store_dwordx4 {v(CL,4)}, v{vA3}, {s(SWS,4)}, s{t1} offen sc1", tag="clr")
        EPV = 100
        E(f"v_mov_b32 v{vT0}, {hex(EP)}")
        E(f"buffer_load_dword v{EPV}, v{vT0}, {s(SWS,4)}, 0 offen sc1", tag="clr")
        self.srd(SWR, KA+2, 2048*514); self.srd(SWI, KA+4, 2048*514)
        E(f"s_lshr_b32 s{t0}, s{sP}, 6"); E(f"s_lshl_b32 s{t0}, s{t0}, 4")
        E(f"s_bfe_u32 s{t1}, s{sP}, 0x10002"); E(f"s_lshl_b32 s{t1}, s{t1}, 3"); E(f"s_add_u32 s{t0}, s{t0}, s{t1}")
        E(f"s_bfe_u32 s{t1}, s{sP}, 0x20003"); E(f"s_lshl_b32 s{t1}, s{t1}, 9"); E(f"s_add_u32 s{t0}, s{t0}, s{t1}")
        E(f"s_bfe_u32 s{t1}, s{sP}, 0x10005"); E(f"s_lshl_b32 s{t1}, s{t1}, 8"); E(f"s_add_u32 s{t0}, s{t0}, s{t1}")
        E(f"s_lshl_b32 s{t1}, s{sW}, 1"); E(f"s_add_u32 s{t0}, s{t0}, s{t1}")
        E(f"s_mul_i32 s{t0}, s{t0}, 514")
        E(f"s_and_b32 s{t1}, s{sP}, 3"); E(f"s_lshl_b32 s{t1}, s{t1}, 7"); E(f"s_add_u32 s{t0}, s{t0}, s{t1}")
        E(f"s_add_u32 s{t0}, s{t0}, 2")
        E(f"v_lshlrev_b32 v{vT1}, 1, v{vL}")
        WRW = 150
        for jj in range(4):
            for dn in range(2):
                E(f"buffer_load_ushort v{WRW+4*dn+jj}, v{vT1}, {s(SWR,4)}, s{t0} offen offset:{514*dn}", tag="W")
                E(f"buffer_load_ushort v{WRW+8+4*dn+jj}, v{vT1}, {s(SWI,4)}, s{t0} offen offset:{514*dn}", tag="W")
            if jj < 3: E(f"s_add_u32 s{t0}, s{t0}, {64*514}")
        E(f"v_lshlrev_b32 v{vT2}, 6, v{vN}"); E(f"v_lshl_add_u32 v{vT2}, v{vQ}, 3, v{vT2}")
        for r in range(2):
            for T in range(2):
                E(f"buffer_load_dwordx2 {v(XC+4*r+2*T,2)}, v{vT2}, {s(SX,4)}, s{t6} offen offset:{1024*r+32*T}", tag="W")
        self.srd(SW1, KA+8, 512*1792*2); self.srd(SW2, KA+12, 1792*512*2); self.srd(SOUT, KA+16, 2097152)
        self.srd(SB1, KA+10, 1792*2); self.srd(SB2, KA+14, 512*2)
        E(f"v_bfe_u32 v{vT0}, v{vL}, 2, 2"); E(f"v_mul_u32_u24 v{vA4}, 3584, v{vT0}")
        E(f"v_lshl_add_u32 v{vA4}, v{vQ}, 6, v{vA4}")
        E(f"v_and_b32 v{vT0}, 3, v{vL}"); E(f"v_lshl_add_u32 v{vA4}, v{vT0}, 4, v{vA4}")
        E(f"v_bfe_u32 v{vT0}, v{vL}, 1, 2"); E(f"v_mul_u32_u24 v{vT0}, 3584, v{vT0}")
        E(f"v_and_b32 v{vT3}, 1, v{vL}"); E(f"v_lshl_add_u32 v{vT0}, v{vT3}, 4, v{vT0}")
        E(f"v_add_u32 v{vT0}, 192, v{vT0}")
        E(f"v_cmp_le_u32 vcc, 48, v{vL}")
        E(f"v_cndmask_b32 v{vA4}, v{vA4}, v{vT0}, vcc")
        E(f"s_mul_i32 s80, s{sW}, {32*896}")
        E(f"s_mul_i32 s81, s{sW}, {128*3584}"); E(f"s_mul_i32 s{t0}, s{sMU}, 224"); E(f"s_add_u32 s81, s81, s{t0}")
        E(f"v_lshrrev_b32 v{vT0}, 5, v{vL}"); E(f"v_lshlrev_b32 v{vA5}, 12, v{vT0}")
        E(f"v_bfe_u32 v{vT0}, v{vL}, 2, 2"); E(f"v_lshl_add_u32 v{vA5}, v{vT0}, 10, v{vA5}")
        E(f"v_bfe_u32 v{vT0}, v{vL}, 4, 1"); E(f"v_lshl_add_u32 v{vA5}, v{vT0}, 6, v{vA5}")
        E(f"v_and_b32 v{vT0}, 3, v{vL}"); E(f"v_lshl_add_u32 v{vA5}, v{vT0}, 4, v{vA5}")
        E(f"s_lshl_b32 s100, s{sW}, 13"); E(f"s_add_u32 s100, s100, {L_ST}")
        E(f"s_mul_i32 s101, s{sW}, {448*1024}"); E(f"s_and_b32 s{t0}, s{sMU}, 7"); E(f"s_lshl_b32 s{t0}, s{t0}, 7")
        E(f"s_add_u32 s101, s101, s{t0}")
        self.const_f32()
        E.wait(vm="x")
        self.stamp("x")
        sa, qa, sb, qb = 110, 111, 112, 113
        for i in range(4):
            for (r, S_, Q_) in ((0, sa, qa), (1, sb, qb)):
                x = XR+4*r+i
                E(f"v_dot2_f32_bf16 v{S_}, v{x}, s{sONES}, {'0' if i == 0 else v(S_)}")
                E(f"v_dot2_f32_bf16 v{Q_}, v{x}, v{x}, {'0' if i == 0 else v(Q_)}")
        U = 130
        fill = []
        for r in range(2):
            for i in range(4):
                fill.append(f"v_lshlrev_b32 v{U+8*r+i}, 16, v{XR+4*r+i}")
                fill.append(f"v_and_b32 v{U+8*r+4+i}, s{sMASK}, v{XR+4*r+i}")
        RR = 114
        self.ln_reduce(sa, qa, sb, qb, RR, fill)
        E.wait(vm="clr")
        E("s_barrier")
        E(f"v_readfirstlane_b32 s{sTOK}, v{EPV}")
        for r in range(2):
            for h in range(0, 8, 2):
                E(f"v_pk_fma_f32 {v(U+8*r+h,2)}, {v(U+8*r+h,2)}, {v(RR+2*r,2)}, {v(RR+2*r,2)} op_sel:[0,0,1] op_sel_hi:[1,0,1]")
        E(f"s_add_u32 s{t5}, s{sTOK}, 1")
        E(f"s_add_u32 s{sTOK}, s{sTOK}, 0x5bd1e995")
        OP = 122
        for p in range(2):
            for r in range(2):
                for h in range(2):
                    E(f"v_cvt_pk_bf16_f32 v{OP+4*p+2*r+h}, v{U+8*r+4*p+2*h}, v{U+8*r+4*p+2*h+1}")
        AC = 170
        for p in range(2):
            self.mm16(AC+4*p, OP+4*p, F16A+2, True)
            self.mm16(AC+8+4*p, OP+4*p, F16A+0, True)
        E(f"s_lshl_b32 s{t0}, s{sP}, 6"); E(f"s_add_u32 s{t0}, s{t0}, {F1}")
        E(f"v_mov_b32 v{vT0}, {hex(OOB)}"); E(f"v_mov_b32 v{vT1}, s{t0}")
        E(f"v_cmp_eq_u32 vcc, 0, v0"); E(f"v_cndmask_b32 v{vT0}, v{vT0}, v{vT1}, vcc")
        E(f"v_mov_b32 v{vT1}, s{sTOK}")
        E(f"buffer_store_dword v{vT1}, v{vT0}, {s(SWS,4)}, 0 offen sc1", tag="f1s")
        TM = 186; Y = 130
        for p in range(2):
            for h in range(0, 4, 2):
                self.cmul_pk(Y+4*p+h, Y+8+4*p+h, AC+4*p+h, AC+8+4*p+h, TWA+4*p+h, TWA+8+4*p+h, TM, False)
        for p in range(2):
            for part in range(2):
                for h in range(2):
                    E(f"v_cvt_pk_bf16_f32 v{OP+4*p+2*part+h}, v{Y+8*part+4*p+2*h}, v{Y+8*part+4*p+2*h+1}")
        for p in range(2):
            for T in range(2):
                self.mm16(AC+4*T, self.f32w(T, p, "fr"), OP+4*p, p == 0)
                self.mm16(AC+8+4*T, self.f32w(T, p, "fi"), OP+4*p, p == 0)
        E(f"v_lshlrev_b32 v{vT2}, 9, v{vQ}"); E(f"v_lshl_add_u32 v{vT2}, v{vN}, 2, v{vT2}")
        E(f"s_lshl_b32 s{t0}, s{sW}, 11"); E(f"s_add_u32 s{t0}, s{t0}, {L_SA}"); E(f"v_add_u32 v{vT2}, s{t0}, v{vT2}")
        E(f"v_lshrrev_b32 v{vT0}, 1, v0"); E(f"v_add_u32 v{vT3}, 1, v{vT0}"); E(f"v_sub_u32 v{vT0}, 511, v{vT0}")
        E(f"v_and_b32 v{vT1}, 1, v0"); E(f"v_cmp_eq_u32 vcc, 1, v{vT1}")
        E(f"v_add_u32 v{Y}, 128, v{vT3}"); E(f"v_subrev_u32 v{Y+1}, 128, v{vT0}")
        E(f"v_cndmask_b32 v{vT3}, v{vT3}, v{vT0}, vcc"); E(f"v_cndmask_b32 v{vT0}, v{Y}, v{Y+1}, vcc")
        E(f"v_lshlrev_b32 v{vT3}, 2, v{vT3}"); E(f"v_lshlrev_b32 v{vT0}, 2, v{vT0}")
        E(f"v_add_u32 v{vT3}, {L_SA}, v{vT3}"); E(f"v_add_u32 v{vT0}, {L_SA}, v{vT0}")
        for T in range(2):
            for i in range(4):
                E(f"v_cvt_pk_bf16_f32 v{Y+4*T+i}, v{AC+4*T+i}, v{AC+8+4*T+i}")
                E(f"ds_write_b32 v{vT2}, v{Y+4*T+i} offset:{128*i+64*T}", tag="a")
        FP = 101
        E(f"s_lshl_b32 s{t0}, s{sW}, 12"); E(f"s_add_u32 s{t0}, s{t0}, {F1}")
        E(f"v_lshlrev_b32 v{vA0}, 6, v{vL}")
        f1load = f"buffer_load_dword v{FP}, v{vA0}, {s(SWS,4)}, s{t0} offen sc1"
        E(f"s_mov_b32 s{t3}, s{t0}")
        f1load = f1load.replace(f"s{t0} offen", f"s{t3} offen")
        E(f1load, tag="f1p")
        E.wait(lg="a")
        E("s_barrier")
        D = 138
        for h, ad in ((0, vT3), (1, vT0)):
            E(f"ds_read2st64_b32 {v(D+4*h,2)}, v{ad} offset0:0 offset1:8", tag=f"a{h}")
            E(f"ds_read2st64_b32 {v(D+4*h+2,2)}, v{ad} offset0:16 offset1:24", tag=f"a{h}")
        E(f"s_lshl_b32 s{t0}, s{sP}, 13"); E(f"s_add_u32 s{t1}, s{t0}, 4096")
        E.wait(lg="a0")
        E(f"buffer_store_dwordx4 {v(D,4)}, v{vA1}, {s(SWS,4)}, s{t0} offen sc1", tag="x1s")
        E.wait(lg="a1")
        E(f"buffer_store_dwordx4 {v(D+4,4)}, v{vA1}, {s(SWS,4)}, s{t1} offen sc1", tag="x1s")
        self.stamp("A_st")
        E.wait(vm="W")
        for r in range(8):
            E(f"v_lshl_or_b32 v{WRW+r}, v{WRW+8+r}, 16, v{WRW+r}")
        E(f"s_lshl_b32 s{t0}, s{sW}, 1"); E(f"v_and_b32 v{vT0}, 7, v{vL}"); E(f"v_xor_b32 v{vT0}, s{t0}, v{vT0}")
        E(f"v_lshlrev_b32 v{vT0}, 4, v{vT0}"); E(f"v_lshl_add_u32 v{vT0}, v{vL}, 7, v{vT0}"); E(f"v_add_u32 v{vT0}, {L_SB}, v{vT0}")
        E(f"v_xor_b32 v{vT1}, 16, v{vT0}")
        E(f"ds_write_b128 v{vT0}, {v(WRW,4)}", tag="w"); E(f"ds_write_b128 v{vT1}, {v(WRW+4,4)}", tag="w")
        E(f"v_lshrrev_b32 v{vT2}, 3, v0"); E(f"v_xor_b32 v{vT3}, v{vT2}, v0"); E(f"v_and_b32 v{vT3}, 7, v{vT3}")
        E(f"v_lshlrev_b32 v{vT3}, 4, v{vT3}"); E(f"v_lshl_add_u32 v{vT3}, v{vT2}, 7, v{vT3}"); E(f"v_add_u32 v{vT3}, {L_SB}, v{vT3}")
        self.checked([f1load], [FP], "f1p", ref=sTOK)
        E.wait(lg="w")
        E("s_barrier")
        E(f"ds_read_b128 {v(WRW+8,4)}, v{vT3}", tag="w0"); E(f"ds_read_b128 {v(WRW+12,4)}, v{vT3} offset:4096", tag="w1r")
        wt_soff(t1, t2)
        E(f"s_add_u32 s{t2}, s{t1}, {32*8192}")
        E.wait(lg="w0")
        E(f"buffer_store_dwordx4 {v(WRW+8,4)}, v{vA3}, {s(SWS,4)}, s{t1} offen sc1", tag="wts")
        E.wait(lg="w1r")
        E(f"buffer_store_dwordx4 {v(WRW+12,4)}, v{vA3}, {s(SWS,4)}, s{t2} offen sc1", tag="wts")
        E(f"v_mov_b32 v{vT0}, {hex(OOB)}"); E(f"v_mov_b32 v{vT1}, {hex(EP)}")
        E(f"s_cmp_eq_u32 s2, 0"); E(f"s_cselect_b32 s{t0}, 0, 1")
        E(f"v_cmp_eq_u32 vcc, s{t0}, v0"); E(f"s_cselect_b64 vcc, vcc, 0")
        E(f"v_cndmask_b32 v{vT0}, v{vT0}, v{vT1}, vcc"); E(f"v_mov_b32 v{vT1}, s{t5}")
        E(f"buffer_store_dword v{vT1}, v{vT0}, {s(SWS,4)}, 0 offen", tag="eps")
        E(f"v_lshrrev_b32 v{vT0}, 3, v0"); E(f"v_lshlrev_b32 v{vA3}, 9, v{vT0}")
        E(f"v_and_b32 v{vT0}, 7, v0"); E(f"v_lshl_add_u32 v{vA3}, v{vT0}, 4, v{vA3}")
        def ln2_soff(d, tmp):
            E(f"s_lshl_b32 s{d}, s{sG}, 17"); E(f"s_lshr_b32 s{tmp}, s{sMU}, 2"); E(f"s_lshl_b32 s{tmp}, s{tmp}, 15")
            E(f"s_add_u32 s{d}, s{d}, s{tmp}"); E(f"s_and_b32 s{tmp}, s{sMU}, 3"); E(f"s_lshl_b32 s{tmp}, s{tmp}, 7")
            E(f"s_add_u32 s{d}, s{d}, s{tmp}"); E(f"s_add_u32 s{d}, s{d}, {LN2}")
        ln2_soff(t1, t2)
        E(f"s_add_u32 s{t2}, s{t1}, 16384")
        E(f"buffer_store_dwordx4 {v(CL,4)}, v{vA3}, {s(SWS,4)}, s{t1} offen sc1", tag="clr2")
        E(f"buffer_store_dwordx4 {v(CL,4)}, v{vA3}, {s(SWS,4)}, s{t2} offen sc1", tag="clr2")
        if self.stop == "A":
            return self.finish()
        self.w1_dma(range(0, 32))
        F64, TF, TI, WF, DZ, A1, A2 = 80, 144, 160, 176, 192, 224, 240
        E(f"s_mov_b32 s{t4}, {lit(2.0**-11)}"); E(f"s_mov_b32 s{t5}, {lit(2.0**-11)}")
        E(f"s_mov_b32 s{t2}, {lit(2.0**-10)}"); E(f"s_mov_b32 s{t3}, {lit(2.0**-10)}")
        self.const_f64(F64)
        self.const_twb(TF, TI)
        E(f"s_lshl_b32 s{t0}, s{sW}, 19"); E(f"s_lshl_b32 s{t1}, s{sP}, 5"); E(f"s_add_u32 s{t0}, s{t0}, s{t1}")
        E(f"s_add_u32 s{t1}, s{t0}, {32*8192}")
        E(f"s_lshl_b32 s{t2}, s{sP}, 13"); E(f"s_lshl_b32 s{t3}, s{sW}, 11"); E(f"s_add_u32 s{t2}, s{t2}, s{t3}")
        E(f"s_add_u32 s{t2}, s{t2}, {WT}")
        RW = A2
        E.wait(vm="x1s")
        lds = [f"buffer_load_dwordx4 {v(DZ,4)}, v{vGA}, {s(SWS,4)}, s{t0} offen sc1",
               f"buffer_load_dwordx4 {v(DZ+4,4)}, v{vGA}, {s(SWS,4)}, s{t1} offen sc1",
               f"buffer_load_dwordx4 {v(RW,4)}, v{vL16}, {s(SWS,4)}, s{t2} offen sc1",
               f"buffer_load_dwordx4 {v(RW+4,4)}, v{vL16}, {s(SWS,4)}, s{t2} offen offset:1024 sc1"]
        for l in lds: E(l, tag="x1p")
        E(f"v_lshrrev_b32 v{vT0}, 5, v{vL}"); E(f"v_lshlrev_b32 v{vT0}, 12, v{vT0}")
        E(f"v_and_b32 v{vT1}, 31, v{vL}"); E(f"v_lshl_add_u32 v{vT0}, v{vT1}, 4, v{vT0}")
        E(f"s_lshl_b32 s{t3}, s{sW}, 10"); E(f"s_add_u32 s{t4}, s{t3}, {L_SA}"); E(f"v_add_u32 v{vA0}, s{t4}, v{vT0}")
        E(f"v_add_u32 v{vA1}, {L_SA}, v{vL16}")
        E(f"v_add_u32 v{vT3}, {L_SB}, v{vL16}"); E(f"v_add_u32 v{vT2}, s{t3}, v{vT3}")
        self.checked(lds, list(range(DZ, DZ+8)) + list(range(RW, RW+8)), "x1p")
        self.stamp("X1")
        E(f"ds_write_b128 v{vA0}, {v(DZ,4)}", tag="b"); E(f"ds_write_b128 v{vA0}, {v(DZ+4,4)} offset:512", tag="b")
        for T in range(2):
            for i in range(4):
                E(f"v_lshlrev_b32 v{WF+4*T+i}, 16, v{RW+2*i+T}")
                E(f"v_and_b32 v{WF+8+4*T+i}, s{sMASK}, v{RW+2*i+T}")
        E.wait(lg="b")
        E("s_barrier")
        for j in range(4):
            for wh in range(2):
                E(f"ds_read_b128 {v(DZ+16*wh+4*j,4)}, v{vA1} offset:{4096*wh+1024*j}", tag=f"b{j}")
        for j in range(4):
            E.wait(lg=f"b{j}")
            self.mm16(A1+0, DZ+4*j, F64+16*j+0, j == 0)
            self.mm16(A1+4, DZ+4*j, F64+16*j+4, j == 0)
            self.mm16(A1+8, DZ+16+4*j, F64+16*j+8, j == 0)
            self.mm16(A1+12, DZ+16+4*j, F64+16*j+12, j == 0)
        Er, Ei, Or, Oi, TM = DZ, DZ+4, DZ+8, DZ+12, DZ+16
        ng = " neg_lo:[0,1] neg_hi:[0,1]"
        for h in (0, 2):
            E(f"v_pk_add_f32 {v(Er+h,2)}, {v(A1+h,2)}, {v(A1+8+h,2)}")
            E(f"v_pk_add_f32 {v(Ei+h,2)}, {v(A1+4+h,2)}, {v(A1+12+h,2)}" + ng)
            E(f"v_pk_add_f32 {v(Or+h,2)}, {v(A1+4+h,2)}, {v(A1+12+h,2)}")
            E(f"v_pk_add_f32 {v(Oi+h,2)}, {v(A1+8+h,2)}, {v(A1+h,2)}" + ng)
        for h in (0, 2):
            self.cmul_pk(A1+h, A1+4+h, Er+h, Ei+h, TF+h, TF+4+h, TM, False)
            self.cmul_pk(A1+8+h, A1+12+h, Or+h, Oi+h, TF+8+h, TF+12+h, TM+4, False)
        OP = DZ+24
        for r in range(8):
            E(f"v_cvt_pk_bf16_f32 v{OP+r}, v{A1+2*r}, v{A1+2*r+1}")
        for p in range(2):
            for T in range(2):
                self.mm16(A2+8*T, self.f32w(T, p, "fr"), OP+4*p, p == 0)
                self.mm16(A2+8*T+4, self.f32w(T, p, "fi"), OP+4*p, p == 0)
        for T in range(2):
            for h in (0, 2):
                self.cmul_pk(A1+8*T+h, A1+8*T+4+h, A2+8*T+h, A2+8*T+4+h, WF+4*T+h, WF+8+4*T+h, TM+4*T, True)
        for r in range(8):
            E(f"v_cvt_pk_bf16_f32 v{OP+r}, v{A1+2*r}, v{A1+2*r+1}")
        for T in range(2):
            for Uu in range(2):
                self.mm16(A2+8*Uu, OP+4*T, self.f32w(Uu, T, "ir"), T == 0)
                self.mm16(A2+8*Uu+4, OP+4*T, self.f32w(Uu, T, "ii"), T == 0)
        for Uu in range(2):
            for h in (0, 2):
                self.cmul_pk(A1+8*Uu+h, A1+8*Uu+4+h, A2+8*Uu+h, A2+8*Uu+4+h, TI+8*Uu+h, TI+8*Uu+4+h, TM+4*Uu, True)
        Pr, Pi, Qr, Qi = DZ, DZ+4, DZ+8, DZ+12
        for h in (0, 2):
            E(f"v_pk_add_f32 {v(Pr+h,2)}, {v(A1+h,2)}, {v(A1+12+h,2)}" + ng)
            E(f"v_pk_add_f32 {v(Pi+h,2)}, {v(A1+4+h,2)}, {v(A1+8+h,2)}")
            E(f"v_pk_add_f32 {v(Qr+h,2)}, {v(A1+h,2)}, {v(A1+12+h,2)}")
            E(f"v_pk_add_f32 {v(Qi+h,2)}, {v(A1+8+h,2)}, {v(A1+4+h,2)}" + ng)
        for i in range(4):
            E(f"v_cvt_pk_bf16_f32 v{OP+i}, v{Pr+i}, v{Pi+i}")
        E(f"ds_write_b128 v{vT2}, {v(OP,4)}", tag="b")
        for i in range(4):
            E(f"v_cvt_pk_bf16_f32 v{OP+4+i}, v{Qr+i}, v{Qi+i}")
        E(f"ds_write_b128 v{vT2}, {v(OP+4,4)} offset:4096", tag="b")
        E.wait(lg="b")
        E("s_barrier")
        for j in range(4):
            for wh in range(2):
                E(f"ds_read_b128 {v(DZ+16*wh+4*j,4)}, v{vT3} offset:{4096*wh+1024*j}", tag=f"b{j}")
        for j in range(4):
            E.wait(lg=f"b{j}")
            self.mm16(A1+0, F64+16*j+8, DZ+4*j, j == 0)
            self.mm16(A1+4, F64+16*j+12, DZ+4*j, j == 0)
            self.mm16(A1+8, F64+16*j+0, DZ+16+4*j, j == 0)
            self.mm16(A1+12, F64+16*j+4, DZ+16+4*j, j == 0)
        E(f"s_lshl_b32 s{t0}, s{sP}, 13"); E(f"s_lshl_b32 s{t1}, s{sW}, 11"); E(f"s_add_u32 s{t0}, s{t0}, s{t1}")
        E(f"s_add_u32 s{t0}, s{t0}, {X2}")
        E("s_nop 7")
        ls = E.newlabel("L_nonyq")
        E(f"s_cmp_lg_u32 s{sP}, 255"); E(f"s_cbranch_scc1 {ls}")
        for r in range(8):
            E(f"v_add_f32 v{A1+r}, v{A1+r}, v{A1+8+r}"); E(f"v_mul_f32 v{A1+r}, 0.5, v{A1+r}"); E(f"v_mov_b32 v{A1+8+r}, 0")
        E.label(ls)
        for i in range(4):
            E(f"v_cvt_pk_bf16_f32 v{DZ+i}, v{A1+i}, v{A1+4+i}")
            E(f"v_cvt_pk_bf16_f32 v{DZ+4+i}, v{A1+8+i}, v{A1+12+i}")
        for i in range(4):
            E(f"v_permlane32_swap_b32 v{DZ+i}, v{DZ+4+i}")
        E.wait(vm="clr2")
        E(f"buffer_store_dwordx4 {v(DZ,4)}, v{vA2}, {s(SWS,4)}, s{t0} offen sc1", tag="x2s")
        E(f"buffer_store_dwordx4 {v(DZ+4,4)}, v{vA2}, {s(SWS,4)}, s{t0} offen offset:1024 sc1", tag="x2s")
        self.stamp("B_st")
        if self.stop == "B":
            return self.finish()
        vW2 = vA5 + 0
        E(f"v_lshrrev_b32 v{vT0}, 5, v{vL}"); E(f"v_lshlrev_b32 v{vA2}, 9, v{vT0}")
        E(f"v_bfe_u32 v{vT0}, v{vL}, 2, 2"); E(f"v_lshl_add_u32 v{vA2}, v{vT0}, 6, v{vA2}")
        E(f"v_bfe_u32 v{vT0}, v{vL}, 4, 1"); E(f"v_lshl_add_u32 v{vA2}, v{vT0}, 5, v{vA2}")
        E(f"v_and_b32 v{vT0}, 3, v{vL}"); E(f"v_lshl_add_u32 v{vA2}, v{vT0}, 3, v{vA2}")
        E(f"v_add_u32 v{vA2}, s100, v{vA2}")
        for b in range(0, 4):
            self.w2_dma(b); self.w2_read(b, vA2)
        F16C, XF, DC, AC, Y, OP, TM = 80, 88, 104, 112, 128, 144, 152
        self.const_f16(F16C, True)
        for r in range(2):
            for T in range(2):
                for h in range(2):
                    E(f"v_lshlrev_b32 v{XF+8*r+4*T+2*h}, 16, v{XC+4*r+2*T+h}")
                    E(f"v_and_b32 v{XF+8*r+4*T+2*h+1}, s{sMASK}, v{XC+4*r+2*T+h}")
        for h, dst in ((0, vA0), (1, vA1)):
            E(f"s_lshl_b32 s{t0}, s{sW}, 5"); E(f"s_add_u32 s{t0}, s{t0}, {128*h}")
            E(f"v_and_b32 v{vT0}, 31, v{vL}"); E(f"v_add_u32 v{vT0}, s{t0}, v{vT0}")
            E(f"v_sub_u32 v{vT1}, 511, v{vT0}")
            E(f"v_cmp_eq_u32 vcc, 255, v{vT0}"); E(f"v_cndmask_b32 v{vT1}, v{vT1}, 0, vcc")
            E(f"v_add_u32 v{vT0}, 1, v{vT0}")
            E(f"v_cmp_le_u32 vcc, 32, v{vL}"); E(f"v_cndmask_b32 v{vT0}, v{vT0}, v{vT1}, vcc")
            E(f"v_and_b32 v{vT1}, 1, v{vT0}"); E(f"v_lshlrev_b32 v{dst}, 10, v{vT1}")
            E(f"v_lshrrev_b32 v{vT1}, 7, v{vT0}"); E(f"v_lshl_add_u32 v{dst}, v{vT1}, 8, v{dst}")
            E(f"v_bfe_u32 v{vT1}, v{vT0}, 1, 4"); E(f"v_lshl_add_u32 v{dst}, v{vT1}, 4, v{dst}")
            E(f"v_bfe_u32 v{vT1}, v{vT0}, 5, 2"); E(f"v_lshl_add_u32 v{dst}, v{vT1}, 2, v{dst}")
            E(f"v_add_u32 v{dst}, {L_SA}, v{dst}")
        E(f"s_lshl_b32 s{t0}, s{sW}, 11"); E(f"s_add_u32 s{t0}, s{t0}, {L_SA}"); E(f"v_add_u32 v{vT2}, s{t0}, v{vL16}")
        E(f"s_lshl_b32 s{t0}, s{sW}, 18"); E(f"s_lshl_b32 s{t1}, s{sG}, 9"); E(f"s_add_u32 s{t0}, s{t0}, s{t1}")
        E(f"s_lshl_b32 s{t1}, s{sMU}, 5"); E(f"s_add_u32 s{t0}, s{t0}, s{t1}"); E(f"s_add_u32 s{t0}, s{t0}, {X2}")
        E(f"s_add_u32 s{t1}, s{t0}, {128*8192}")
        E.wait(vm="x2s")
        lds = [f"buffer_load_dwordx4 {v(DC,4)}, v{vGA}, {s(SWS,4)}, s{t0} offen sc1",
               f"buffer_load_dwordx4 {v(DC+4,4)}, v{vGA}, {s(SWS,4)}, s{t1} offen sc1"]
        for l in lds: E(l, tag="x2p")
        self.checked(lds, list(range(DC, DC+8)), "x2p")
        self.stamp("X2")
        for h, ad in ((0, vA0), (1, vA1)):
            for rho in range(4):
                E(f"ds_write_b32 v{ad}, v{DC+4*h+rho} offset:{2048*rho}", tag="c")
        E.wait(lg="c")
        E("s_barrier")
        E(f"ds_read_b128 {v(DC,4)}, v{vT2}", tag="c0"); E(f"ds_read_b128 {v(DC+4,4)}, v{vT2} offset:1024", tag="c1")
        for p in range(2):
            E.wait(lg=f"c{p}")
            self.mm16(AC+4*p, DC+4*p, F16C, True)
            self.mm16(AC+8+4*p, DC+4*p, F16C+4, True)
        for p in range(2):
            for h in (0, 2):
                self.cmul_pk(Y+4*p+h, Y+8+4*p+h, AC+4*p+h, AC+8+4*p+h, TWA+4*p+h, TWA+8+4*p+h, TM, True)
        for p in range(2):
            for part in range(2):
                for h in range(2):
                    E(f"v_cvt_pk_bf16_f32 v{OP+4*p+2*part+h}, v{Y+8*part+4*p+2*h}, v{Y+8*part+4*p+2*h+1}")
        for p in range(2):
            for T in range(2):
                self.mm16(AC+4*T, OP+4*p, self.f32w(T, p, "ir"), p == 0)
                self.mm16(AC+8+4*T, OP+4*p, self.f32w(T, p, "ii"), p == 0)
        E(f"v_lshlrev_b32 v{vT0}, 2, v{vN}"); E(f"v_add_u32 v{vT0}, v{vT0}, v{vQ}"); E(f"v_lshlrev_b32 v{vT0}, 7, v{vT0}")
        E(f"s_lshl_b32 s{t0}, s{sW}, 1"); E(f"v_and_b32 v{vT1}, 7, v{vN}"); E(f"v_xor_b32 v{vT1}, s{t0}, v{vT1}")
        E(f"v_lshl_add_u32 v{vA0}, v{vT1}, 4, v{vT0}"); E(f"v_add_u32 v{vA0}, {L_SB}, v{vA0}"); E(f"v_xor_b32 v{vA1}, 16, v{vA0}")
        E(f"v_lshrrev_b32 v{vT0}, 5, v0"); E(f"v_xor_b32 v{vT0}, v{vT0}, v0"); E(f"v_and_b32 v{vT0}, 7, v{vT0}")
        E(f"v_lshrrev_b32 v{vT1}, 3, v0"); E(f"v_lshlrev_b32 v{vT1}, 7, v{vT1}"); E(f"v_lshl_add_u32 v{vT3}, v{vT0}, 4, v{vT1}")
        E(f"v_add_u32 v{vT3}, {L_SB}, v{vT3}")
        H = AC
        for r in range(0, 16, 2):
            E(f"v_pk_add_f32 {v(H+r,2)}, {v(H+r,2)}, {v(XF+r,2)}")
        sa, qa, sb, qb, RR = Y, Y+1, Y+2, Y+3, Y+12
        for r, (S_, Q_) in enumerate(((sa, qa), (sb, qb))):
            b = H+8*r; u = Y+4+4*r
            E(f"v_pk_add_f32 {v(u,2)}, {v(b,2)}, {v(b+2,2)}"); E(f"v_pk_mul_f32 {v(u+2,2)}, {v(b,2)}, {v(b,2)}")
            E(f"v_pk_add_f32 {v(u,2)}, {v(u,2)}, {v(b+4,2)}"); E(f"v_pk_fma_f32 {v(u+2,2)}, {v(b+2,2)}, {v(b+2,2)}, {v(u+2,2)}")
            E(f"v_pk_add_f32 {v(u,2)}, {v(u,2)}, {v(b+6,2)}"); E(f"v_pk_fma_f32 {v(u+2,2)}, {v(b+4,2)}, {v(b+4,2)}, {v(u+2,2)}")
            E(f"v_add_f32 v{S_}, v{u}, v{u+1}"); E(f"v_pk_fma_f32 {v(u+2,2)}, {v(b+6,2)}, {v(b+6,2)}, {v(u+2,2)}")
            E(f"v_add_f32 v{Q_}, v{u+2}, v{u+3}")
        HBF = DC
        fill = [f"v_cvt_pk_bf16_f32 v{HBF+r}, v{H+2*r}, v{H+2*r+1}" for r in range(8)]
        self.ln_reduce(sa, qa, sb, qb, RR, fill)
        for r in range(2):
            for h in range(0, 8, 2):
                E(f"v_pk_fma_f32 {v(H+8*r+h,2)}, {v(H+8*r+h,2)}, {v(RR+2*r,2)}, {v(RR+2*r,2)} op_sel:[0,0,1] op_sel_hi:[1,0,1]")
            for h in range(4):
                E(f"v_cvt_pk_bf16_f32 v{OP+4*r+h}, v{H+8*r+2*h}, v{H+8*r+2*h+1}")
            E(f"ds_write_b128 v{vA0 if r == 0 else vA1}, {v(OP+4*r,4)}", tag="c")
        E.wait(lg="c")
        E("s_barrier")
        E(f"ds_read_b128 {v(Y,4)}, v{vT3}", tag="c0"); E(f"ds_read_b128 {v(Y+4,4)}, v{vT3} offset:4096", tag="c1")
        ln2_soff(t1, t2)
        E(f"s_add_u32 s{t2}, s{t1}, 16384")
        for r in range(2):
            E(f"v_permlane16_swap_b32 v{HBF+4*r}, v{HBF+4*r+2}"); E(f"v_permlane16_swap_b32 v{HBF+4*r+1}, v{HBF+4*r+3}")
        E.wait(lg="c0")
        E(f"buffer_store_dwordx4 {v(Y,4)}, v{vA3}, {s(SWS,4)}, s{t1} offen sc1", tag="lns")
        E.wait(lg="c1")
        E(f"buffer_store_dwordx4 {v(Y+4,4)}, v{vA3}, {s(SWS,4)}, s{t2} offen sc1", tag="lns")
        E(f"v_lshlrev_b32 v{vT0}, 6, v{vN}"); E(f"v_and_b32 v{vT1}, 1, v{vQ}"); E(f"v_lshl_add_u32 v{vT0}, v{vT1}, 5, v{vT0}")
        E(f"v_lshrrev_b32 v{vT1}, 1, v{vQ}"); E(f"v_lshl_add_u32 v{vT0}, v{vT1}, 4, v{vT0}")
        E(f"s_add_u32 s{t0}, s{t6}, {HR}")
        E(f"buffer_store_dwordx4 {v(HBF,4)}, v{vT0}, {s(SWS,4)}, s{t0} offen sc1", tag="hrs")
        E(f"buffer_store_dwordx4 {v(HBF+4,4)}, v{vT0}, {s(SWS,4)}, s{t0} offen offset:1024 sc1", tag="hrs")
        self.stamp("C_st")
        if self.stop == "C":
            return self.finish()
        ACC, LN, WFR, GT = 64, 128, 16, 40
        B1R = 16
        E(f"v_lshrrev_b32 v{vT0}, 5, v{vL}"); E(f"v_lshlrev_b32 v{vT0}, 3, v{vT0}")
        E(f"s_mul_i32 s{t0}, s{sMU}, 224")
        for g4 in range(14):
            E(f"buffer_load_dwordx2 {v(B1R+2*g4,2)}, v{vT0}, {s(SB1,4)}, s{t0} offen offset:{16*g4}", tag="b1")
        for b in range(4, 7):
            self.w2_dma(b); self.w2_read(b, vA2)
        E.wait(vm="b1")
        for g4 in range(14):
            for h in range(2):
                E(f"v_lshlrev_b32 v{ACC+4*g4+2*h}, 16, v{B1R+2*g4+h}")
                E(f"v_and_b32 v{ACC+4*g4+2*h+1}, s{sMASK}, v{B1R+2*g4+h}")
        for r in range(56, 64): E(f"v_mov_b32 v{ACC+r}, 0")
        E(f"v_lshrrev_b32 v{vT0}, 5, v{vL}"); E(f"v_mul_u32_u24 v{vT0}, 1792, v{vT0}")
        E(f"v_and_b32 v{vT1}, 3, v{vL}"); E(f"v_lshl_add_u32 v{vT0}, v{vT1}, 3, v{vT0}")
        E(f"v_bfe_u32 v{vT1}, v{vL}, 2, 2"); E(f"v_lshl_add_u32 v{vT2}, v{vT1}, 5, v{vT0}")
        E(f"v_lshl_add_u32 v{vA0}, v{vT1}, 6, v{vT0}")
        E(f"v_bfe_u32 v{vT1}, v{vL}, 4, 1"); E(f"v_lshl_add_u32 v{vA0}, v{vT1}, 5, v{vA0}")
        E(f"v_add_u32 v{vA1}, 57344, v{vA0}"); E(f"v_add_u32 v{vT3}, 57344, v{vT2}")
        E(f"s_lshl_b32 s{t0}, s{sG}, 17"); E(f"s_lshl_b32 s{t1}, s{sW}, 15"); E(f"s_add_u32 s{t0}, s{t0}, s{t1}")
        E(f"s_add_u32 s{t0}, s{t0}, {LN2}")
        for b in range(8): E(f"s_add_u32 s{40+b}, s{t0}, {4096*b}")
        E.wait(vm=["w1", "lns"])
        E("s_barrier")
        lnl = [[f"buffer_load_dwordx4 {v(LN+16*b+4*x,4)}, v{vL16}, {s(SWS,4)}, s{40+b} offen offset:{1024*x} sc1" for x in range(4)] for b in range(8)]
        for b in range(8):
            for l in lnl[b]: E(l, tag=f"ln{b}")
        def w1rd(ks, Uu, dst, tag):
            ad = (vA0, vA1)[ks >= 16] if Uu < 3 else (vT2, vT3)[ks >= 16]
            for e2 in range(2):
                E(f"ds_read_b64_tr_b16 {v(dst+2*e2,2)}, v{ad} offset:{(ks%16)*3584+e2*896+Uu*256}", tag=tag)
        def mm32(d, x, y, first=False):
            E(f"v_mfma_f32_32x32x16_bf16 {v(d,16)}, {x}, {y}, {'0' if first else v(d,16)}")
        for grp, tiles in enumerate(((0, 1, 2), (3,))):
            for ti, Uu in enumerate(tiles): w1rd(0, Uu, WFR+4*ti, "k0")
            for ks in range(32):
                if grp == 0 and ks % 4 == 0:
                    b = ks//4
                    self.checked(lnl[b], list(range(LN+16*b, LN+16*b+16)), f"ln{b}", tmp=GT)
                    if b == 0: self.stamp("LN")
                if ks < 31:
                    for ti, Uu in enumerate(tiles): w1rd(ks+1, Uu, WFR+12*((ks+1) & 1)+4*ti, f"k{ks+1}")
                E.wait(lg=f"k{ks}")
                for ti, Uu in enumerate(tiles):
                    mm32(ACC+16*Uu, v(WFR+12*(ks & 1)+4*ti, 4), v(LN+4*ks, 4))
        self.stamp("G1mm")
        E(f"s_lshl_b32 s{t0}, s{sG}, 2"); E(f"s_add_u32 s{t0}, s{t0}, s{sW}"); E(f"s_lshl_b32 s{t0}, s{t0}, 4")
        E(f"s_add_u32 s{t0}, s{t0}, s{sMU}"); E(f"s_mul_i32 s{t0}, s{t0}, 7168"); E(f"s_add_u32 s{t0}, s{t0}, {HB}")
        E(f"s_add_u32 s{t1}, s{t0}, 4096")
        k2 = -2.0*math.sqrt(2.0/math.pi)*math.log2(math.e); k1 = k2*0.044715
        E(f"s_mov_b32 s{t2}, {lit(k1)}"); E(f"s_mov_b32 s{t3}, {lit(k1)}")
        E(f"v_mov_b32 v{GT+16}, {lit(k2)}"); E(f"v_mov_b32 v{GT+17}, {lit(k2)}")
        for u in range(7):
            b = ACC+8*u
            for h in range(0, 8, 2):
                E(f"v_pk_mul_f32 {v(GT+h,2)}, {v(b+h,2)}, {v(b+h,2)}")
            for h in range(0, 8, 2):
                E(f"v_pk_fma_f32 {v(GT+h,2)}, {v(GT+h,2)}, s[{t2}:{t2+1}], {v(GT+16,2)}")
            for h in range(0, 8, 2):
                E(f"v_pk_mul_f32 {v(GT+h,2)}, {v(GT+h,2)}, {v(b+h,2)}")
            for h in range(8): E(f"v_exp_f32 v{GT+h}, v{GT+h}")
            for h in range(0, 8, 2):
                E(f"v_pk_add_f32 {v(GT+h,2)}, {v(GT+h,2)}, 1.0 op_sel_hi:[1,0]")
            for h in range(8): E(f"v_rcp_f32 v{GT+h}, v{GT+h}")
            for h in range(0, 8, 2):
                E(f"v_pk_mul_f32 {v(GT+h,2)}, {v(GT+h,2)}, {v(b+h,2)}")
            o_ = GT+8+4*(u & 1)
            for h in range(4): E(f"v_cvt_pk_bf16_f32 v{o_+h}, v{GT+2*h}, v{GT+2*h+1}")
            E(f"buffer_store_dwordx4 {v(o_,4)}, v{vL16}, {s(SWS,4)}, s{t0 if u < 4 else t1} offen offset:{1024*(u%4)} sc1", tag="hs")
        self.stamp("G1_st")
        E(f"s_lshl_b32 s{t0}, s{sP}, 2"); E(f"s_add_u32 s{t0}, s{t0}, s{sW}"); E(f"s_lshl_b32 s{t0}, s{t0}, 6")
        E(f"s_add_u32 s{t0}, s{t0}, {F2}")
        E(f"v_mov_b32 v{vT0}, {hex(OOB)}"); E(f"v_mov_b32 v{vT1}, s{t0}")
        E(f"v_cmp_eq_u32 vcc, 0, v{vL}"); E(f"v_cndmask_b32 v{vT0}, v{vT0}, v{vT1}, vcc")
        E(f"v_mov_b32 v{vT1}, s{sTOK}")
        E.wait(vm=["hs", "hrs"])
        E(f"buffer_store_dword v{vT1}, v{vT0}, {s(SWS,4)}, 0 offen sc1", tag="f2s")
        if self.stop == "G1":
            return self.finish()
        E(f"s_lshl_b32 s{t0}, s{sG}, 12"); E(f"s_add_u32 s{t0}, s{t0}, {F2}")
        E(f"v_lshlrev_b32 v{vA0}, 6, v{vL}")
        f2load = f"buffer_load_dword v{GT}, v{vA0}, {s(SWS,4)}, s{t0} offen sc1"
        E(f"v_lshrrev_b32 v{vT0}, 4, v{vL}"); E(f"v_lshlrev_b32 v{vA1}, 15, v{vT0}")
        E(f"v_bfe_u32 v{vT0}, v{vL}, 3, 1"); E(f"v_lshl_add_u32 v{vA1}, v{vT0}, 10, v{vA1}")
        E(f"v_and_b32 v{vT0}, 7, v{vL}"); E(f"v_lshlrev_b32 v{vT1}, 4, v{vT0}"); E(f"v_add_u32 v{vA1}, v{vA1}, v{vT1}")
        E(f"s_lshl_b32 s46, s{sG}, 7"); E(f"s_lshr_b32 s{t1}, s{sMU}, 3"); E(f"s_lshl_b32 s{t1}, s{t1}, 4"); E(f"s_add_u32 s46, s46, s{t1}")
        E(f"s_lshl_b32 s{t1}, s{sW}, 1"); E(f"s_add_u32 s46, s46, s{t1}"); E(f"s_lshl_b32 s46, s46, 10")
        E(f"s_and_b32 s{t1}, s{sMU}, 7"); E(f"s_lshl_b32 s47, s{t1}, 7"); E(f"s_add_u32 s46, s46, s47")
        E(f"s_add_u32 s48, s46, {8*1024}"); E(f"s_add_u32 s49, s46, {HR}"); E(f"s_add_u32 s50, s48, {HR}")
        E(f"s_lshl_b32 s{t1}, s{sG}, 2"); E(f"s_lshr_b32 s{t2}, s{sMU}, 3"); E(f"s_lshl_b32 s{t2}, s{t2}, 1"); E(f"s_add_u32 s{t1}, s{t1}, s{t2}")
        E(f"s_lshl_b32 s{t1}, s{t1}, 4"); E(f"s_lshl_b32 s{t2}, s{sW}, 2"); E(f"s_add_u32 s{t1}, s{t1}, s{t2}")
        E(f"s_mul_i32 s{t1}, s{t1}, 7168"); E(f"s_add_u32 s52, s{t1}, {HB}"); E(f"s_add_u32 s53, s52, {16*7168}")
        E(f2load, tag="f2p")
        self.checked([f2load], [GT], "f2p", ref=sTOK)
        self.stamp("F2")
        HF = 128; EPI = 16
        def hload(li):
            tau, ks = divmod(li, 28)
            E(f"s_add_u32 s{t2}, s{52+tau}, {(ks//4)*4096}") if ks % 4 == 0 else None
            E(f"buffer_load_dwordx4 {v(HF+4*(li%32),4)}, v{vL16}, {s(SWS,4)}, s{t2} offen offset:{1024*(ks%4)} sc1", tag=f"h{li}")
        for li in range(32): hload(li)
        E(f"buffer_load_dwordx4 {v(EPI,4)}, v{vA1}, {s(SWS,4)}, s49 offen sc1", tag="epi")
        E(f"buffer_load_dwordx4 {v(EPI+4,4)}, v{vA1}, {s(SWS,4)}, s50 offen sc1", tag="epi")
        E(f"buffer_load_dwordx4 {v(EPI+8,4)}, v{vT1}, {s(SB2,4)}, s47 offen", tag="epi")
        E(f"v_and_b32 v{vT2}, 31, v{vL}"); E(f"v_lshrrev_b32 v{vT3}, 5, v{vL}"); E(f"v_xor_b32 v{vT3}, v{vT3}, v{vT2}")
        E(f"v_and_b32 v{vT3}, 7, v{vT3}"); E(f"v_lshlrev_b32 v{vT3}, 4, v{vT3}"); E(f"v_lshl_add_u32 v{vT2}, v{vT2}, 8, v{vT3}")
        E(f"s_lshl_b32 s{t3}, s{sW}, 13"); E(f"v_add_u32 v{vT2}, s{t3}, v{vT2}")
        WA = 28
        for x in range(4): E(f"v_xor_b32 v{WA+x}, {32*x}, v{vT2}")
        E(f"v_lshrrev_b32 v{vT2}, 3, v{vL}"); E(f"v_lshlrev_b32 v{vT3}, 1, v{vT0}"); E(f"v_xor_b32 v{vT3}, v{vT3}, v{vT2}")
        E(f"v_lshlrev_b32 v{vT3}, 4, v{vT3}"); E(f"v_lshl_add_u32 v{vT3}, v{vT2}, 8, v{vT3}")
        E(f"s_lshl_b32 s{t3}, s{sW}, 11"); E(f"v_add_u32 v{WA+4}, s{t3}, v{vT3}"); E(f"v_xor_b32 v{WA+5}, 16, v{WA+4}")
        for x in range(6): E(f"v_add_u32 v{WA+6+x}, {L_ST}, v{WA+x}")
        for li in range(56):
            tau, ks = divmod(li, 28)
            E.wait(vm=f"h{li}")
            for V in range(2):
                mm32(ACC+32*tau+16*V, a((ks*2+V)*4, 4), v(HF+4*(li % 32), 4), ks == 0)
            if li + 32 < 56: hload(li+32)
        self.stamp("G2mm")
        RD = 128
        for tau in range(2):
            wa = WA+6 if tau == 0 else WA
            for V in range(2):
                for a4 in range(4):
                    E(f"ds_write_b128 v{wa+a4}, {v(ACC+32*tau+16*V+4*a4,4)} offset:{128*V}", tag="r")
        E.wait(lg="r")
        E("s_barrier")
        E.wait(vm="epi")
        B2F = 40
        for r in range(4):
            E(f"v_lshlrev_b32 v{B2F+2*r}, 16, v{EPI+8+r}"); E(f"v_and_b32 v{B2F+2*r+1}, s{sMASK}, v{EPI+8+r}")
        for tau in range(2):
            ra = WA+10 if tau == 0 else WA+4
            for src in range(4):
                for x in range(2):
                    E(f"ds_read_b128 {v(RD+32*tau+8*src+4*x,4)}, v{ra+x} offset:{8192*src}", tag=f"r{tau}{src}")
        for tau in range(2):
            HX = 48
            for r in range(4):
                E(f"v_lshlrev_b32 v{HX+2*r}, 16, v{EPI+4*tau+r}"); E(f"v_and_b32 v{HX+2*r+1}, s{sMASK}, v{EPI+4*tau+r}")
            for h in range(0, 8, 2): E(f"v_pk_add_f32 {v(HX+h,2)}, {v(HX+h,2)}, {v(B2F+h,2)}")
            for src in range(4):
                E.wait(lg=f"r{tau}{src}")
                for h in range(0, 8, 2): E(f"v_pk_add_f32 {v(HX+h,2)}, {v(HX+h,2)}, {v(RD+32*tau+8*src+h,2)}")
            for r in range(4): E(f"v_cvt_pk_bf16_f32 v{56+4*tau+r}, v{HX+2*r}, v{HX+2*r+1}")
            E(f"buffer_store_dwordx4 {v(56+4*tau,4)}, v{vA1}, {s(SOUT,4)}, s{46 if tau == 0 else 48} offen", tag="out")
        return self.finish()
    def finish(self):
        E = self.E
        if self.prof:
            E.wait(vm="all")
            self.stamp("end")
            E(f"v_mov_b32 v{vT0}, 0")
            for i in range(self.nstamp): E(f"v_writelane_b32 v{vT0}, s{84+i}, {i}")
            E(f"s_lshl_b32 s{t0}, s2, 2"); E(f"s_add_u32 s{t0}, s{t0}, s{sW}"); E(f"s_lshl_b32 s{t0}, s{t0}, 8")
            E(f"s_add_u32 s{t0}, s{t0}, {PROF}")
            E(f"v_lshlrev_b32 v{vT1}, 2, v{vL}")
            E(f"buffer_store_dword v{vT0}, v{vT1}, {s(SWS,4)}, s{t0} offen")
            if self.o.get("dbg") is not None:
                self.srd(SX, KA+18, 256)
                E(f"v_subrev_u32 v{vT0}, s84, v{vT0}")
                E(f"v_lshlrev_b32 v{vT1}, 2, v0")
                E(f"v_mov_b32 v{vT2}, {hex(OOB)}")
                E(f"v_cmp_gt_u32 vcc, 16, v0")
                E(f"s_cmp_eq_u32 s2, {self.o['dbg']}")
                E(f"s_cselect_b64 vcc, vcc, 0")
                E(f"v_cndmask_b32 v{vT1}, v{vT2}, v{vT1}, vcc")
                E(f"buffer_store_dword v{vT0}, v{vT1}, {s(SX,4)}, 0 offen")
        if self.prof and self.o.get("amp") is not None:
            i = self.o["amp"]; i0 = self.o.get("amp0", 0)
            if i < 0: i = self.nstamp - 1
            E(f"s_cmp_lg_u32 s2, 0"); E("s_cbranch_scc1 L_end")
            if self.o.get("pre"):
                E(f"v_mov_b32 v{vT0}, {hex(EP+256)}")
                E(f"buffer_load_dword v{vT0}, v{vT0}, {s(SWS,4)}, 0 offen sc1"); E("s_waitcnt vmcnt(0)")
                E(f"v_readfirstlane_b32 s{84+i0}, v{vT0}"); E("s_nop 4")
            E(f"s_sub_u32 s{t0}, s{84+i}, s{84+i0}"); E(f"s_min_u32 s{t0}, s{t0}, 20000"); E(f"s_mul_i32 s{t0}, s{t0}, 10")
            E(f"s_mov_b32 s{t2}, 1000000")
            E.label("L_amp")
            E(f"s_memrealtime s[{sSTAMP}:{sSTAMP+1}]"); E("s_waitcnt lgkmcnt(0)")
            E(f"s_sub_u32 s{t1}, s{sSTAMP}, s{84+self.nstamp-1}")
            E(f"s_sub_u32 s{t2}, s{t2}, 1"); E("s_cbranch_scc1 L_end")
            E(f"s_cmp_lt_u32 s{t1}, s{t0}"); E("s_cbranch_scc1 L_amp")
        E.wait(vm="all", lg="all")
        E.label("L_end")
        E("s_endpgm")
        hdr = f"; @launch grid=(256,1,1) block=(256,1,1) lds={L_END}\n"
        pre = ""; pred = ""
        if self.o.get("pre") or self.o.get("post"):
            l0 = "; @launch kernel=pre_kernel grid=(1,1,1) block=(64,1,1) lds=0\n"
            l1 = f"; @launch kernel={KNAME} grid=(256,1,1) block=(256,1,1) lds={L_END}\n"
            hdr = l0*self.o.get("pre", 0) + l1 + l0*self.o.get("post", 0)
            pre = f""".globl pre_kernel
.p2align 8
.type pre_kernel,@function
pre_kernel:
    s_memrealtime s[10:11]
    s_load_dwordx2 s[4:5], s[0:1], 80
    s_waitcnt lgkmcnt(0)
    s_mov_b32 s12, s4
    s_mov_b32 s13, s5
    s_mov_b32 s14, {hex(WS_SIZE)}
    s_mov_b32 s15, 0x00020000
    v_mov_b32 v1, s10
    v_mov_b32 v2, {hex(EP+256)}
    s_cmp_lg_u32 s2, 0
    s_cbranch_scc1 L_pre_end
    buffer_store_dword v1, v2, s[12:15], 0 offen
    s_waitcnt vmcnt(0)
L_pre_end:
    s_endpgm
"""
            pred = """.p2align 6
.amdhsa_kernel pre_kernel
  .amdhsa_next_free_vgpr 8
  .amdhsa_next_free_sgpr 24
  .amdhsa_accum_offset 8
  .amdhsa_group_segment_fixed_size 0
  .amdhsa_kernarg_size 88
  .amdhsa_user_sgpr_count 2
  .amdhsa_user_sgpr_kernarg_segment_ptr 1
  .amdhsa_system_sgpr_workgroup_id_x 1
.end_amdhsa_kernel
"""
        hdr += '.amdgcn_target "amdgcn-amd-amdhsa--gfx950"\n.text\n'
        hdr += f".globl {KNAME}\n.p2align 8\n.type {KNAME},@function\n{KNAME}:\n"
        desc = f""".section .rodata,"a"
.p2align 6
.amdhsa_kernel {KNAME}
  .amdhsa_next_free_vgpr 512
  .amdhsa_next_free_sgpr 102
  .amdhsa_accum_offset 256
  .amdhsa_group_segment_fixed_size 0
  .amdhsa_kernarg_size 88
  .amdhsa_user_sgpr_count 2
  .amdhsa_user_sgpr_kernarg_segment_ptr 1
  .amdhsa_system_sgpr_workgroup_id_x 1
  .amdhsa_float_denorm_mode_32 3
.end_amdhsa_kernel
"""
        return hdr + E.text() + pre + desc + pred

if __name__ == "__main__":
    import argparse
    ap = argparse.ArgumentParser()
    ap.add_argument("-o", default="sequential_preLN__spectral_gfnet__mixer_channel_mlp__prompt.s")
    ap.add_argument("--prof", action="store_true")
    ap.add_argument("--stop", default=None)
    ap.add_argument("--opt", action="append", default=[])
    args = ap.parse_args()
    opts = {}
    for x in args.opt:
        kk, vv = x.split("=")
        opts[kk] = int(vv) if vv.lstrip("-").isdigit() else vv
    k = K(prof=args.prof, stop=args.stop, opts=opts)
    txt = k.build()
    open(args.o, "w").write(txt)
    if args.prof: open(args.o + ".names", "w").write(" ".join(k.names))
    print("wrote", args.o, len(txt), "bytes; nops inserted:", k.E.nnop)
```

```python
import re

TRANS = ("v_exp_f32", "v_log_f32", "v_rcp_f32", "v_rsq_f32", "v_sqrt_f32", "v_sin_f32", "v_cos_f32")
RMW = ("v_fmac_f32", "v_dot2c_f32_bf16")
REG_RE = re.compile(r"^-?(?:abs\()?([vas])(\d+|\[(\d+):(\d+)\])\)?$")

def regs_of(tok):
    tok = tok.strip()
    if tok in ("vcc", "exec"):
        return [(tok, 0), (tok, 1)]
    if tok in ("vcc_lo", "exec_lo"): return [(tok[:-3], 0)]
    if tok in ("vcc_hi", "exec_hi"): return [(tok[:-3], 1)]
    if tok == "m0": return [("m0", 0)]
    m = REG_RE.match(tok)
    if not m: return []
    k = m.group(1)
    if m.group(3) is not None:
        return [(k, r) for r in range(int(m.group(3)), int(m.group(4)) + 1)]
    return [(k, int(m.group(2)))]

class Ins:
    __slots__ = ("text", "op", "dst", "src", "kind", "passes", "srcC", "srcAB", "dpp", "wide_data", "nstates")

def parse(text):
    I = Ins(); I.text = text
    t = text.split(";")[0].strip()
    sp = t.split(None, 1)
    op = sp[0]; I.op = op
    rest = sp[1] if len(sp) > 1 else ""
    toks = []; depth = 0; cur = ""
    for ch in rest:
        if ch in "[(": depth += 1
        if ch in "])": depth -= 1
        if ch == "," and depth == 0: toks.append(cur.strip()); cur = ""
        else: cur += ch
    if cur.strip(): toks.append(cur.strip())
    mods = ""
    if toks:
        p = toks[-1].split(None, 1)
        toks[-1] = p[0]
        if len(p) > 1: mods = p[1]
    I.dst = []; I.src = []; I.passes = 0; I.srcC = []; I.srcAB = []; I.wide_data = []; I.nstates = 1
    I.dpp = ("quad_perm" in mods or "row_" in mods) and op.startswith("v_")
    R = [regs_of(x) for x in toks]
    flat = lambda L: [r for x in L for r in x]
    if op.startswith("v_mfma"):
        I.kind = "mfma"; I.passes = 8 if "32x32" in op else 4
        I.dst = R[0]; I.srcAB = R[1] + R[2]; I.srcC = R[3]; I.src = I.srcAB + I.srcC
    elif op.startswith("v_permlane"):
        I.kind = "perml"; I.dst = R[0] + R[1]; I.src = R[0] + R[1]
    elif op.startswith("v_readlane") or op.startswith("v_readfirstlane"):
        I.kind = "rdlane"; I.dst = R[0]; I.src = flat(R[1:])
    elif op.startswith("v_writelane"):
        I.kind = "valu"; I.dst = R[0]; I.src = flat(R)
    elif op.startswith("v_"):
        base = re.sub(r"_(e32|e64|dpp|sdwa)$", "", op)
        I.kind = "trans" if base in TRANS else ("dot" if base.startswith("v_dot") else "valu")
        I.dst = R[0]; I.src = flat(R[1:])
        if base in RMW: I.src += R[0]
        if base.startswith("v_add_co") or base.startswith("v_addc_co"): I.dst = R[0] + R[1]; I.src = flat(R[2:])
        if I.dpp: I.src += R[0]
    elif op.startswith("buffer_load"):
        I.kind = "vmem"
        if re.search(r"\blds\b", mods):
            I.src = flat(R) + [("m0", 0)]; I.kind = "vmem_lds"
        else:
            I.dst = R[0]; I.src = flat(R[1:])
    elif op.startswith("buffer_store") or op.startswith("buffer_atomic"):
        I.kind = "vmem"; I.src = flat(R)
        if "x4" in op or "x3" in op: I.wide_data = R[0]
    elif op.startswith("ds_read"):
        I.kind = "ds"; I.dst = R[0]; I.src = flat(R[1:])
    elif op.startswith("ds_write"):
        I.kind = "ds"; I.src = flat(R)
    elif op == "s_nop":
        I.kind = "nop"; I.nstates = int(toks[0], 0) + 1
    elif op.startswith("s_cmp") or op.startswith("s_bitcmp"):
        I.kind = "salu"; I.src = flat(R)
    elif op in ("s_waitcnt", "s_barrier", "s_sleep", "s_setprio", "s_endpgm", "s_branch") or op.startswith("s_cbranch"):
        I.kind = "sctl"
        if op in ("s_cbranch_vccnz", "s_cbranch_vccz"): I.src = [("vcc", 0), ("vcc", 1)]
    elif op.startswith("s_load") or op in ("s_memtime", "s_memrealtime"):
        I.kind = "smem"; I.dst = R[0]; I.src = flat(R[1:])
    elif op.startswith("s_"):
        I.kind = "salu"; I.dst = R[0]; I.src = flat(R[1:])
        if op == "s_and_saveexec_b64": I.dst = I.dst + [("exec", 0), ("exec", 1)]
    else:
        raise ValueError("unknown op " + text)
    return I

VALUK = ("valu", "trans", "dot", "perml", "rdlane")

def need(p, c):
    n = 0
    pd = set(p.dst)
    vec = lambda S: {r for r in S if r[0] in "va"}
    sc = lambda S: {r for r in S if r[0] in ("s", "vcc", "exec")}
    if p.kind in VALUK:
        pv = vec(pd)
        if pv:
            if c.kind == "mfma" and pv & set(c.src): n = max(n, 2)
            if c.kind in VALUK and c.dpp and pv & set(c.src): n = max(n, 2)
            if c.kind == "perml" and pv & set(c.src): n = max(n, 2)
            if c.kind == "rdlane" and pv & set(c.src): n = max(n, 1)
            if p.kind == "trans" and c.kind in VALUK + ("mfma",) and pv & set(c.src): n = max(n, 1)
            if p.kind == "dot" and pv & (set(c.src) | set(c.dst)):
                same = c.op == p.op and (pv & set(c.dst)) and not (pv & (set(c.src) - set(c.dst)))
                if not same: n = max(n, 3)
        ps = sc(pd)
        if ps:
            if c.kind in ("vmem", "vmem_lds") and ps & set(c.src): n = max(n, 5)
            if c.kind in VALUK + ("mfma",) and ps & set(c.src): n = max(n, 4 if c.kind == "rdlane" or c.op.startswith("v_writelane") else 2)
            if ("exec", 0) in ps and c.kind in VALUK + ("mfma",): n = max(n, 5)
    if p.kind == "mfma":
        big = p.passes == 8
        if c.kind == "mfma":
            if pd & set(c.srcAB): n = max(n, 12 if big else 8)
            if pd & set(c.srcC):
                if not (set(c.srcC) == pd and c.passes == p.passes): n = max(n, 10 if big else 6)
            if pd & set(c.dst) and not (set(c.dst) == pd and set(c.srcC) == pd and c.passes == p.passes):
                n = max(n, 10 if big else 6)
        elif c.kind in VALUK + ("vmem", "vmem_lds", "ds"):
            if pd & (set(c.src) | set(c.dst)): n = max(n, 12 if big else 8)
            if c.kind in VALUK and set(p.srcC) & set(c.dst): n = max(n, 7 if big else 3)
    if p.wide_data:
        if set(p.wide_data) & set(c.dst): n = max(n, 2 if c.kind in VALUK + ("mfma",) else 1)
    if p.kind == "salu" and ("m0", 0) in pd and c.kind == "vmem_lds": n = max(n, 1)
    return n

class Emit:
    def __init__(self):
        self.out = []
        self.hist = []
        self.uid = 0
        self.vm = []
        self.lg = []
        self.ool = []
        self.nnop = 0
    def raw(self, line): self.out.append(line)
    def comment(self, s): self.out.append("    ; " + s)
    def newlabel(self, base="L"):
        self.uid += 1
        return f"{base}_{self.uid}"
    def label(self, name, fence=False):
        self.out.append(name + ":")
        if fence: self.fence()
    def fence(self):
        self("s_nop 7"); self("s_nop 4")
    def one(self, text, tag=None):
        I = parse(text)
        dist = 0; req = 0
        for p in reversed(self.hist):
            k = need(p, I) - dist
            if k > req: req = k
            dist += p.nstates
            if dist >= 20: break
        while req > 0:
            k = min(req, 8)
            nop = parse(f"s_nop {k-1}")
            self.out.append(f"    s_nop {k-1}"); self.hist.append(nop); self.nnop += k
            req -= k
        self.out.append("    " + text)
        self.hist.append(I)
        if len(self.hist) > 64: self.hist = self.hist[-40:]
        if I.kind in ("vmem", "vmem_lds"):
            self.vm.append(tag)
        elif I.kind == "ds":
            self.lg.append(tag)
        elif I.op == "s_waitcnt":
            m = re.search(r"vmcnt\((\d+)\)", text)
            if m:
                n = int(m.group(1))
                if len(self.vm) > n: self.vm = self.vm[len(self.vm)-n:] if n else []
            m = re.search(r"lgkmcnt\((\d+)\)", text)
            if m:
                n = int(m.group(1))
                if len(self.lg) > n: self.lg = self.lg[len(self.lg)-n:] if n else []
    def __call__(self, text, tag=None):
        for l in text.split("\n"):
            l = l.strip()
            if not l: continue
            if l.startswith(";"): self.out.append("    " + l); continue
            self.one(l, tag)
    def _cnt(self, lst, tags):
        if not isinstance(tags, (list, tuple, set)): tags = [tags]
        idx = -1
        for i, t in enumerate(lst):
            if t in tags: idx = i
        return None if idx < 0 else len(lst) - 1 - idx
    def wait(self, vm=None, lg=None):
        parts = []
        if vm is not None:
            n = 0 if vm == "all" else self._cnt(self.vm, vm)
            if n is not None and (vm == "all" or True): parts.append(f"vmcnt({min(n,63)})")
        if lg is not None:
            n = 0 if lg == "all" else self._cnt(self.lg, lg)
            if n is not None: parts.append(f"lgkmcnt({min(n,15)})")
        if parts: self("s_waitcnt " + " ".join(parts))
    def text(self):
        return "\n".join(self.out) + "\n" + "\n".join(self.ool) + ("\n" if self.ool else "")

def v(a, n=1): return f"v{a}" if n == 1 else f"v[{a}:{a+n-1}]"
def a(x, n=1): return f"a{x}" if n == 1 else f"a[{x}:{x+n-1}]"
def s(x, n=1): return f"s{x}" if n == 1 else f"s[{x}:{x+n-1}]"


class Rec:
    def __init__(self): self.items = []
    def __call__(self, text, tag=None):
        for l in text.split("\n"):
            l = l.strip()
            if l: self.items.append(("i", l, tag))
    def wait(self, vm=None, lg=None): self.items.append(("w", vm, lg))
    def call(self, fn): self.items.append(("c", fn, None))
    def group(self, items): self.items.append(("g", list(items), None))
    def mark(self, name): self.items.append(("m", name, None))

def play(E, items):
    for k, x, y in items:
        if k == "i": E(x, tag=y)
        elif k == "w": E.wait(vm=x, lg=y)
        elif k == "c": x(E)
        elif k == "g": play(E, x)
        elif k == "m": pass

def spread(main, side, lo=0.0, hi=1.0):
    n = len(main); m = len(side)
    if m == 0: return list(main)
    a, b = int(lo*n), int(hi*n)
    pos = [a + ((b-a)*(k+1))//(m+1) for k in range(m)]
    out = []; k = 0
    for i, it in enumerate(main):
        while k < m and pos[k] <= i:
            out.append(side[k]); k += 1
        out.append(it)
    out += side[k:]
    return out

def after_each(main, pred, side, per=1):
    out = []; side = list(side)
    for it in main:
        out.append(it)
        if pred(it):
            for _ in range(per):
                if side: out.append(side.pop(0))
    return out + side

def is_mfma(it): return it[0] == "i" and it[1].startswith("v_mfma")
def cost(it):
    if it[0] == "g": return sum(cost(x) for x in it[1])
    if it[0] != "i": return 0
    op = it[1].split()[0]
    return 8 if op in TRANS else 4
```

```python
import sys, math, struct, contextlib, re
from emit import Emit, Rec, play, spread, after_each, is_mfma, cost, v, a, s
KNAME = "sequential_preLN__spectral_gfnet__mixer_channel_mlp__prompt_kernel"
MB = 1 << 20
X1, X2, WT, LN2, HR, HB = 0, 2*MB, 4*MB, 6*MB, 8*MB, 10*MB
F1 = 18*MB; EP = F1 + 32768; PROF = 19*MB; WS_SIZE = 20*MB
L_W1, L_ST, L_SA, L_SB, L_END = 0, 114688, 147456, 155648, 163840
SX, SWS, SW1, SW2, SOUT, SWR, SWI, SB1, SB2 = 4, 8, 12, 16, 20, 24, 28, 32, 36
KA = 40
sX1S, sX2S, sWTS, sLNS, sHS = 48, 49, 50, 51, 52
sH0, sH1, sO0, sO1, sR0, sR1, sLN1, sHS1 = 53, 54, 55, 56, 57, 60, 61, 58
sJ, sT, sG, sMU, sP, sW, sTOK, sTO = 62, 63, 64, 65, 66, 67, 68, 69
t0, t1, t2, t3, t4, t5, t6, t7 = 70, 71, 72, 73, 74, 75, 76, 77
sMASK, sONES, sW1L, sW1G, sSTAMP = 78, 79, 80, 81, 82
sW2L, sW2G = 100, 101
vL, vN, vQ = 1, 2, 3
vGA, vL16, vA0, vA1, vA2, vA3, vA4, vA5, vT0, vT1, vT2, vT3 = 4, 5, 6, 7, 8, 9, 10, 11, 12, 13, 14, 15
F32, TWA, XC, W1A = 16, 56, 160, 72
OOB = 0x7ffffff0
vFL = 79; aCL = 224
DEFAULT_SCH = 'P1=x;Q1=g,b,a4;B0=l,h2;B2=r;B3=a8;P2=b,a4;Q2=r,a8;C0=h5;P3=b,a4;P3b=r,b;G1=r,b,r,b,r,b;G2=r'
def lit(x): return hex(struct.unpack("<I", struct.pack("<f", x))[0])

class K:
    def __init__(self, prof=False, stop=None, opts=None):
        self.E = Emit(); self.R = self.E; self.prof = prof; self.stop = stop; self.nstamp = 0; self.names = []
        self.o = dict(opts or {})
        sch = self.o.get("sch", DEFAULT_SCH)
        self.sch = {}
        for it in sch.split(";"):
            if it:
                k, val = it.split("="); self.sch[k] = re.findall(r"[a-z]\d*", val)
        self.clk = "s_memtime" if self.o.get("cyc") else "s_memrealtime"
        self.w1n = 0; self.w2n = 0; self.w2pend = None; self.hn = 0; self.done = set(); self.used = set()
    @contextlib.contextmanager
    def rec(self):
        old = self.R; r = Rec(); self.R = r
        try: yield r.items
        finally: self.R = old
    def play(self, items):
        if isinstance(self.R, Rec): self.R.items += items
        else: play(self.E, items)
    def call(self, fn):
        if isinstance(self.R, Rec): self.R.call(fn)
        else: fn(self.E)
    def stamp(self, name):
        if not self.prof: return
        if self.o.get("stamps") and name not in self.o["stamps"].split(","): return
        assert self.nstamp < 16
        n = self.nstamp
        def f(E):
            E(f"{self.clk} s[{sSTAMP}:{sSTAMP+1}]"); E("s_waitcnt lgkmcnt(0)"); E(f"s_mov_b32 s{84+n}, s{sSTAMP}")
        self.call(f)
        self.names.append(name); self.nstamp += 1
    def srd(self, dst, base, nbytes):
        R = self.R
        R(f"s_mov_b32 s{dst}, s{base}"); R(f"s_mov_b32 s{dst+1}, s{base+1}")
        R(f"s_mov_b32 s{dst+2}, {hex(nbytes)}"); R(f"s_mov_b32 s{dst+3}, 0x00020000")
    def test_items(self, regs, tmp, ref=None):
        out = []
        if ref is None:
            R = list(regs)
            out.append(f"v_max3_u32 v{tmp}, v{R[0]}, v{R[1]}, v{R[2] if len(R) > 2 else R[1]}"); R = R[3:]
            while R:
                out.append(f"v_max3_u32 v{tmp}, v{tmp}, v{R[0]}, v{R[1] if len(R) > 1 else R[0]}"); R = R[2:]
            out.append(f"v_cmp_eq_u32 vcc, -1, v{tmp}")
        else:
            for r in regs: out.append(f"v_xor_b32 v{r}, s{ref}, v{r}")
            out.append(f"v_or3_b32 v{tmp}, v{regs[0]}, v{regs[1]}, v{regs[2]}")
            out.append(f"v_or_b32 v{tmp}, v{tmp}, v{regs[3]}")
            out.append(f"v_cmp_ne_u32 vcc, 0, v{tmp}")
        return out
    def branch_retry(self, loads, tests):
        def f(E):
            lr, lc = E.newlabel("L_retry"), E.newlabel("L_cont")
            E(f"s_cbranch_vccnz {lr}"); E.label(lc)
            o = [f"{lr}:", "    s_nop 7", "    s_nop 7", f"    s_sub_u32 s{sTO}, s{sTO}, 1", f"    s_cbranch_scc1 {lr}_to"]
            o += ["    " + l for l in loads] + ["    s_waitcnt vmcnt(0)"] + ["    " + t for t in tests]
            o += [f"    s_cbranch_vccnz {lr}", "    s_nop 7", f"    s_branch {lc}",
                  f"{lr}_to:", f"    s_mov_b32 s{sTO}, 0", "    s_nop 7", f"    s_branch {lc}"]
            E.ool += o
        self.call(f)
    def checked(self, loads, regs, tag, tmp=vT0, ref=None):
        self.R.wait(vm=tag)
        tests = self.test_items(regs, tmp, ref)
        for t in tests: self.R(t)
        self.branch_retry(loads, tests)
    def sincos(self, ang, c, sn, tmp):
        R = self.R
        R(f"v_fract_f32 v{tmp}, v{ang}"); R(f"v_cos_f32 v{c}, v{tmp}"); R(f"v_sin_f32 v{sn}, v{tmp}")
    def cmul_pk(self, dr, di, xr, xi, c, sn, t, conj):
        R = self.R; n = " neg_lo:[0,0,1] neg_hi:[0,0,1]"
        R(f"v_pk_mul_f32 {v(t,2)}, {v(xi,2)}, {v(sn,2)}")
        R(f"v_pk_mul_f32 {v(t+2,2)}, {v(xr,2)}, {v(sn,2)}")
        R(f"v_pk_fma_f32 {v(dr,2)}, {v(xr,2)}, {v(c,2)}, {v(t,2)}" + (n if conj else ""))
        R(f"v_pk_fma_f32 {v(di,2)}, {v(xi,2)}, {v(c,2)}, {v(t+2,2)}" + ("" if conj else n))
    def ln_reduce(self, sa, qa, sb, qb, RR, fill=()):
        R = self.R; fill = list(fill)
        def f(n=1):
            for _ in range(n):
                if fill: R(fill.pop(0))
        f(2)
        R(f"v_permlane32_swap_b32 v{sa}, v{sb}"); R(f"v_permlane32_swap_b32 v{qa}, v{qb}")
        R(f"v_add_f32 v{sa}, v{sa}, v{sb}"); R(f"v_add_f32 v{qa}, v{qa}, v{qb}")
        f(2)
        R(f"v_permlane16_swap_b32 v{sa}, v{qa}"); R(f"v_add_f32 v{sa}, v{sa}, v{qa}")
        for r in (8, 4, 2, 1):
            f(2)
            R(f"v_add_f32_dpp v{sa}, v{sa}, v{sa} row_ror:{r} row_mask:0xf bank_mask:0xf")
        R(f"v_mov_b32 v{qa}, v{sa}")
        f(2)
        R(f"v_permlane16_swap_b32 v{sa}, v{qa}")
        R(f"v_mul_f32 v{sa}, {lit(1/512)}, v{sa}")
        R(f"v_mul_f32 v{sb}, v{sa}, v{sa}")
        R(f"v_fma_f32 v{qa}, v{qa}, s{t7}, -v{sb}")
        R(f"v_max_f32 v{qa}, 0, v{qa}")
        R(f"v_add_f32 v{qa}, {lit(1e-5)}, v{qa}")
        R(f"v_rsq_f32 v{RR}, v{qa}")
        f(1)
        R(f"v_mul_f32 v{RR+1}, -v{sa}, v{RR}")
        R(f"v_mov_b32 v{RR+2}, v{RR}"); R(f"v_mov_b32 v{RR+3}, v{RR+1}")
        f(2)
        R(f"v_permlane32_swap_b32 v{RR}, v{RR+2}"); R(f"v_permlane32_swap_b32 v{RR+1}, v{RR+3}")
        f(len(fill))
    def mm16(self, d, x, y, first):
        self.R(f"v_mfma_f32_16x16x32_bf16 {v(d,4)}, {v(x,4)}, {v(y,4)}, {'0' if first else v(d,4)}")
    def mm32(self, d, x, y, first=False):
        self.R(f"v_mfma_f32_32x32x16_bf16 {v(d,16)}, {x}, {y}, {'0' if first else v(d,16)}")
    def f32w(self, T, p, win): return F32 + (T*2+p)*10 + {"fi": 0, "fr": 2, "ii": 4, "ir": 6}[win]
    def const_f32(self):
        R = self.R; c = 200; sn = 204; ang = 208; tmp = 209; st = 210
        for T in range(2):
            R(f"v_lshlrev_b32 v{st}, 1, v{vN}")
            if T: R(f"v_add_u32 v{st}, 1, v{st}")
            R(f"v_cvt_f32_u32 v{st}, v{st}"); R(f"v_mul_f32 v{st}, {lit(1/32)}, v{st}")
            for p in range(2):
                R(f"v_lshlrev_b32 v{ang}, 3, v{vQ}")
                if p: R(f"v_add_u32 v{ang}, 1, v{ang}")
                R(f"v_cvt_f32_u32 v{ang}, v{ang}"); R(f"v_mul_f32 v{ang}, v{ang}, v{st}")
                for i in range(4):
                    if i: R(f"v_fma_f32 v{ang}, v{st}, 2.0, v{ang}")
                    self.sincos(ang, c+i, sn+i, tmp)
                b = F32 + (T*2+p)*10
                R(f"v_cvt_pk_bf16_f32 v{b+2}, v{c}, v{c+1}"); R(f"v_cvt_pk_bf16_f32 v{b+3}, v{c+2}, v{c+3}")
                R(f"v_cvt_pk_bf16_f32 v{b+4}, v{sn}, v{sn+1}"); R(f"v_cvt_pk_bf16_f32 v{b+5}, v{sn+2}, v{sn+3}")
                R(f"v_cvt_pk_bf16_f32 v{b+0}, -v{sn}, -v{sn+1}"); R(f"v_cvt_pk_bf16_f32 v{b+1}, -v{sn+2}, -v{sn+3}")
                R(f"v_mov_b64 {v(b+6,2)}, {v(b+2,2)}"); R(f"v_mov_b64 {v(b+8,2)}, {v(b+0,2)}")
    def const_twa(self):
        R = self.R; st = 210; ang = 208; tmp = 209
        R(f"v_cvt_f32_u32 v{st}, v{vN}"); R(f"v_mul_f32 v{st}, {lit(1/512)}, v{st}")
        for p in range(2):
            R(f"v_lshlrev_b32 v{ang}, 3, v{vQ}")
            if p: R(f"v_add_u32 v{ang}, 1, v{ang}")
            R(f"v_cvt_f32_u32 v{ang}, v{ang}"); R(f"v_mul_f32 v{ang}, v{ang}, v{st}")
            for i in range(4):
                if i: R(f"v_fma_f32 v{ang}, v{st}, 2.0, v{ang}")
                self.sincos(ang, TWA+4*p+i, TWA+8+4*p+i, tmp)
    def const_f16(self, dst, interleaved):
        R = self.R; c = 200; sn = 204; ang = 208; tmp = 209; st = 210
        R(f"v_cvt_f32_u32 v{st}, v{vN}"); R(f"v_mul_f32 v{st}, {lit(1/16)}, v{st}")
        R(f"v_lshlrev_b32 v{ang}, 2, v{vQ}"); R(f"v_cvt_f32_u32 v{ang}, v{ang}"); R(f"v_mul_f32 v{ang}, v{ang}, v{st}")
        for i in range(4):
            if i: R(f"v_add_f32 v{ang}, v{ang}, v{st}")
            self.sincos(ang, c+i, sn+i, tmp)
        if not interleaved:
            R(f"v_cvt_pk_bf16_f32 v{dst+2}, v{c}, v{c+1}"); R(f"v_cvt_pk_bf16_f32 v{dst+3}, v{c+2}, v{c+3}")
            R(f"v_cvt_pk_bf16_f32 v{dst+4}, v{sn}, v{sn+1}"); R(f"v_cvt_pk_bf16_f32 v{dst+5}, v{sn+2}, v{sn+3}")
            R(f"v_cvt_pk_bf16_f32 v{dst+0}, -v{sn}, -v{sn+1}"); R(f"v_cvt_pk_bf16_f32 v{dst+1}, -v{sn+2}, -v{sn+3}")
        else:
            for i in range(4):
                R(f"v_cvt_pk_bf16_f32 v{dst+i}, v{c+i}, -v{sn+i}"); R(f"v_cvt_pk_bf16_f32 v{dst+4+i}, v{sn+i}, v{c+i}")
    def const_f64(self, dst):
        R = self.R; c = 240; sn = 241; ang = 242; tmp = 243; st = 244; a0 = 245
        R(f"s_lshl_b32 s{t3}, s{sW}, 4"); R(f"v_add_u32 v{st}, s{t3}, v{vN}")
        R(f"v_cvt_f32_u32 v{st}, v{st}"); R(f"v_mul_f32 v{st}, {lit(1/64)}, v{st}")
        R(f"v_lshlrev_b32 v{a0}, 2, v{vQ}"); R(f"v_cvt_f32_u32 v{a0}, v{a0}")
        for j in range(4):
            if j: R(f"v_add_f32 v{a0}, {lit(16.0)}, v{a0}")
            R(f"v_mul_f32 v{ang}, v{a0}, v{st}")
            for i in range(4):
                if i: R(f"v_add_f32 v{ang}, v{ang}, v{st}")
                self.sincos(ang, c, sn, tmp)
                b = dst + 16*j + i
                R(f"v_cvt_pk_bf16_f32 v{b+0}, v{c}, v{sn}"); R(f"v_cvt_pk_bf16_f32 v{b+4}, -v{sn}, v{c}")
                R(f"v_cvt_pk_bf16_f32 v{b+8}, v{c}, -v{sn}"); R(f"v_cvt_pk_bf16_f32 v{b+12}, v{sn}, v{c}")
    def const_twb(self, fw, iv, tb):
        R = self.R; ang = tb; tmp = tb+1; st = tb+2; a0 = tb+3
        R(f"s_lshl_b32 s{t3}, s{sW}, 4"); R(f"v_add_u32 v{st}, s{t3}, v{vN}")
        R(f"v_cvt_f32_u32 v{st}, v{st}"); R(f"v_mul_f32 v{st}, {lit(1/2048)}, v{st}")
        R(f"v_lshlrev_b32 v{a0}, 3, v{vQ}"); R(f"v_cvt_f32_u32 v{a0}, v{a0}"); R(f"v_mul_f32 v{ang}, v{a0}, v{st}")
        for i in range(4):
            for p in range(2):
                if i or p: R(f"v_add_f32 v{ang}, v{ang}, v{st}")
                self.sincos(ang, fw+8*p+i, fw+8*p+4+i, tmp)
        R(f"v_mov_b32 v{tmp}, {lit(2.0**-21)}")
        for r in range(0, 16, 2):
            R(f"v_pk_mul_f32 {v(fw+r,2)}, {v(fw+r,2)}, {v(tmp-1,2)} op_sel:[0,1] op_sel_hi:[1,1]")
        R(f"v_lshlrev_b32 v{a0}, 2, v{vQ}"); R(f"v_add_u32 v{a0}, s{t3}, v{a0}")
        R(f"v_cvt_f32_u32 v{a0}, v{a0}"); R(f"v_mul_f32 v{a0}, {lit(1/2048)}, v{a0}")
        R(f"v_lshlrev_b32 v{st}, 1, v{vN}"); R(f"v_cvt_f32_u32 v{st}, v{st}")
        for i in range(4):
            if i: R(f"v_add_f32 v{a0}, {lit(1/2048)}, v{a0}")
            R(f"v_mul_f32 v{ang}, v{a0}, v{st}")
            self.sincos(ang, iv+i, iv+4+i, tmp)
            R(f"v_add_f32 v{ang}, v{ang}, v{a0}")
            self.sincos(ang, iv+8+i, iv+12+i, tmp)
    def w1_items(self, lo, hi):
        out = []
        for i in range(lo, hi):
            nl, x = divmod(i, 7)
            g = [("i", f"s_add_u32 m0, s{sW1L}, {nl*7168 + x*1024}", None)]
            if x == 0 or i == lo: g.append(("i", f"s_add_u32 s{sT}, s{sW1G}, {nl*32*3584}", None))
            else: g.append(("i", "s_nop 0", None))
            g.append(("i", f"buffer_load_dwordx4 v{W1A+x}, {s(SW1,4)}, s{sT} offen lds", "w1"))
            out.append(("g", g, None))
        return out
    def w2_items(self, b):
        return [("g", [("i", f"s_add_u32 m0, s{sW2L}, {x*1024}", None),
                       ("i", f"s_add_u32 s{t4}, s{sW2G}, {(64*b+8*x)*1024}", None),
                       ("i", f"buffer_load_dwordx4 v{vA4}, {s(SW2,4)}, s{t4} offen lds", f"w2_{b}")], None) for x in range(8)]
    def w2_read_items(self, b):
        out = []
        for ksl in range(4):
            for V in range(2):
                for e2 in range(2):
                    d = ((4*b+ksl)*2+V)*4 + 2*e2
                    out.append(("i", f"ds_read_b64_tr_b16 {a(d,2)}, v{vA5} offset:{ksl*2048+e2*1024+V*256}", f"w2r{b}"))
        return out
    def w2_read(self, b):
        self.R.wait(vm=f"w2_{b}")
        self.play(self.w2_read_items(b))
        self.R.wait(lg=f"w2r{b}")
    def slot(self, name):
        out = []; self.used.add(name)
        for tok in self.sch.get(name, []):
            k, n = tok[0], int(tok[1:] or 1)
            if k == "a":
                n = min(n, 28 - self.w1n)
                if n and not self.w1map_done:
                    assert name in ("W0", "P1", "Q1", "P2", "Q2", "P3", "rest"), name
                    out += [("g", self.w1map[i:i+20], None) for i in range(0, len(self.w1map), 20)]; self.w1map_done = True
                out += self.w1_items(self.w1n, self.w1n + n); self.w1n += n
            elif k == "b":
                if self.w2n < 7:
                    assert self.w2pend is None, name
                    it = self.w2_items(self.w2n)
                    if self.w2n: it[0] = ("g", [("w", None, f"w2r{self.w2n-1}")] + it[0][1], None)
                    out += it; self.w2pend = self.w2n; self.w2n += 1
            elif k == "r":
                if self.w2pend is not None:
                    it = self.w2_read_items(self.w2pend)
                    it[0] = ("g", [("w", f"w2_{self.w2pend}", None), it[0]], None)
                    out += it; self.w2pend = None
            elif k == "x":
                out += self.clr_items([(vA2, sX2S, 0, "clrx"), (vA2, sX2S, 1024, "clrx")]); self.done.add("x")
            elif k == "l":
                assert name not in ("W0", "A0")
                out += self.clr_items([(vA3, sLNS, 0, "clrl"), (vA3, sLN1, 0, "clrl")]); self.done.add("l")
            elif k == "h":
                assert name not in ("W0", "A0")
                for u in range(self.hn, min(7, self.hn + n)):
                    out += self.clr_items([(vL16, sHS if u < 4 else sHS1, 1024*(u % 4), "clrh")])
                self.hn = min(7, self.hn + n)
            elif k == "g":
                assert "x" in self.done and name in ("Q1", "B0", "B1")
                out.append(("g", [("w", "clrx", None), ("i", f"v_mov_b32 v{vT0}, s{sTOK}", None),
                                  ("i", f"buffer_store_dword v{vT0}, v{vFL}, {s(SWS,4)}, 0 offen offset:16 sc1", "f2s")], None))
                self.done.add("g")
            else: raise ValueError(tok)
        return out
    def clr_items(self, lst):
        return [("i", f"buffer_store_dwordx4 {a(aCL,4)}, v{ad}, {s(SWS,4)}, s{so} offen offset:{off} sc1", tag) for (ad, so, off, tag) in lst]
    def build(self):
        R = self.R; o = self.o
        R("s_cmp_ge_u32 s2, 256"); R("s_cbranch_scc1 L_end")
        for sr, off in ((SX, 0), (SWS, 80), (SWR, 8), (SWI, 16), (SW1, 32), (SW2, 48), (SB1, 40), (SB2, 56), (SOUT, 64)):
            R(f"s_load_dwordx2 s[{sr}:{sr+1}], s[0:1], {off}")
        if self.prof: R(f"{self.clk} s[{sSTAMP}:{sSTAMP+1}]")
        R(f"v_lshrrev_b32 v{vT0}, 6, v0"); R(f"v_and_b32 v{vL}, 63, v0")
        R(f"v_readfirstlane_b32 s{sW}, v{vT0}")
        if o.get("cpf", 1):
            R(f"s_getpc_b64 s[40:41]")
            self.E.label("L_pc")
            R(f"s_mov_b32 s42, L_code_end-L_pc"); R(f"s_mov_b32 s43, 0x00020000")
            R(f"v_lshlrev_b32 v{vT1}, 7, v0")
            R(f"buffer_load_dword v222, v{vT1}, s[40:43], 0 offen", tag="cpf")
        for sr, nb in ((SX, 2097152), (SWS, WS_SIZE), (SWR, 2048*514), (SWI, 2048*514), (SW1, 512*1792*2), (SW2, 1792*512*2),
                       (SB1, 1792*2), (SB2, 512*2), (SOUT, 2097152)):
            R(f"s_mov_b32 s{sr+2}, {hex(nb)}"); R(f"s_mov_b32 s{sr+3}, 0x00020000")
        R(f"v_and_b32 v{vN}, 15, v0"); R(f"v_lshrrev_b32 v{vQ}, 4, v{vL}")
        R(f"s_and_b32 s{sJ}, s2, 7"); R(f"s_lshr_b32 s{sT}, s2, 3")
        R(f"s_lshl_b32 s{sP}, s{sJ}, 5"); R(f"s_add_u32 s{sP}, s{sP}, s{sT}")
        R(f"s_lshr_b32 s{sG}, s{sP}, 4"); R(f"s_and_b32 s{sMU}, s{sP}, 15")
        R(f"s_mov_b32 s{sTO}, 200000")
        R(f"s_mov_b32 s{sMASK}, 0xffff0000"); R(f"s_mov_b32 s{sONES}, 0x3f803f80"); R(f"s_mov_b32 s{t7}, {lit(1/512)}")
        R(f"v_lshlrev_b32 v{vL16}, 4, v{vL}")
        R(f"v_lshlrev_b32 v{vA0}, 8, v{vQ}"); R(f"v_lshl_add_u32 v{vA0}, v{vN}, 2, v{vA0}")
        R(f"s_lshl_b32 s{t0}, s{sG}, 7"); R(f"s_lshl_b32 s{t1}, s{sW}, 5"); R(f"s_add_u32 s{t0}, s{t0}, s{t1}")
        R(f"s_lshl_b32 s{t1}, s{sMU}, 1"); R(f"s_add_u32 s{t0}, s{t0}, s{t1}"); R(f"s_lshl_b32 s{t6}, s{t0}, 10")
        R(f"v_lshlrev_b32 v{vA1}, 4, v0")
        R(f"v_bfe_u32 v{vT0}, v{vL}, 4, 1"); R(f"v_lshlrev_b32 v{vA2}, 9, v{vT0}")
        R(f"v_lshl_add_u32 v{vA2}, v{vN}, 5, v{vA2}")
        R(f"v_lshrrev_b32 v{vT0}, 5, v{vL}"); R(f"v_lshl_add_u32 v{vA2}, v{vT0}, 4, v{vA2}")
        R(f"v_lshrrev_b32 v{vT0}, 1, v{vN}"); R(f"v_lshlrev_b32 v{vA3}, 14, v{vT0}")
        R(f"v_and_b32 v{vT0}, 1, v{vL}"); R(f"v_lshl_add_u32 v{vA3}, v{vT0}, 6, v{vA3}"); R(f"v_lshl_add_u32 v{vA3}, v{vQ}, 4, v{vA3}")
        R(f"v_bfe_u32 v{vT0}, v{vL}, 3, 2"); R(f"v_lshlrev_b32 v{vT0}, 6, v{vT0}")
        R(f"v_lshrrev_b32 v{vT1}, 5, v{vL}"); R(f"v_add_u32 v{vT0}, v{vT0}, v{vT1}"); R(f"v_mul_u32_u24 v102, 514, v{vT0}")
        R(f"v_and_b32 v{vT0}, 7, v{vL}"); R(f"v_lshl_add_u32 v102, v{vT0}, 4, v102")
        CL = 96; EPV = 100; XR = 86; F16A = 80; WRW = 150
        for r in range(4): R(f"v_accvgpr_write_b32 a{aCL+r}, -1")
        R(f"v_mov_b32 v{vT2}, {hex(EP)}")
        R(f"s_lshl_b32 s{sX1S}, s{sP}, 13"); R(f"s_add_u32 s{t2}, s{sX1S}, 4096")
        R(f"s_and_b32 s{t0}, s{sP}, 3"); R(f"s_lshl_b32 s{t0}, s{t0}, 2"); R(f"s_add_u32 s{t0}, s{t0}, s{sW}"); R(f"s_lshl_b32 s{t0}, s{t0}, 17")
        R(f"s_lshr_b32 s{t1}, s{sP}, 2"); R(f"s_lshl_b32 s{t1}, s{t1}, 8"); R(f"s_add_u32 s{t0}, s{t0}, s{t1}"); R(f"s_add_u32 s{sWTS}, s{t0}, {WT}")
        R(f"s_lshl_b32 s{t1}, s{sW}, 11"); R(f"s_add_u32 s{t1}, s{t1}, s{sX1S}"); R(f"s_add_u32 s{sX2S}, s{t1}, {X2}")
        R(f"s_lshr_b32 s{t0}, s{sP}, 6"); R(f"s_lshl_b32 s{t0}, s{t0}, 4")
        R(f"s_bfe_u32 s{t1}, s{sP}, 0x10002"); R(f"s_lshl_b32 s{t1}, s{t1}, 3"); R(f"s_add_u32 s{t0}, s{t0}, s{t1}")
        R(f"s_bfe_u32 s{t1}, s{sP}, 0x20003"); R(f"s_lshl_b32 s{t1}, s{t1}, 9"); R(f"s_add_u32 s{t0}, s{t0}, s{t1}")
        R(f"s_bfe_u32 s{t1}, s{sP}, 0x10005"); R(f"s_lshl_b32 s{t1}, s{t1}, 8"); R(f"s_add_u32 s{t0}, s{t0}, s{t1}")
        R(f"s_lshl_b32 s{t1}, s{sW}, 1"); R(f"s_add_u32 s{t0}, s{t0}, s{t1}"); R(f"s_mul_i32 s{t0}, s{t0}, 514")
        R(f"s_and_b32 s{t1}, s{sP}, 3"); R(f"s_lshl_b32 s{t1}, s{t1}, 7"); R(f"s_add_u32 s{t0}, s{t0}, s{t1}"); R(f"s_add_u32 s{sO0}, s{t0}, 2")
        self.const_f16(F16A, False)
        if o.get("twa_early", 1): self.const_twa()
        R("s_waitcnt lgkmcnt(0)")
        if self.prof:
            R(f"s_mov_b32 s84, s{sSTAMP}"); self.names.append("start"); self.nstamp = 1
        self.stamp("karg")
        for r in range(2):
            for i in range(4):
                R(f"buffer_load_dword v{XR+4*r+i}, v{vA0}, {s(SX,4)}, s{t6} offen offset:{1024*r+64*i}", tag="x")
        clr1 = self.clr_items([(vA1, sX1S, 0, "clr"), (vA1, t2, 0, "clr"), (vA3, sWTS, 0, "clr"), (vA3, sWTS, 128, "clr")])
        wld = [("i", f"buffer_load_dwordx4 {v(WRW,4)}, v102, {s(SWR,4)}, s{sO0} offen", "W"),
               ("i", f"buffer_load_dwordx4 {v(WRW+4,4)}, v102, {s(SWI,4)}, s{sO0} offen", "W")]
        R(f"buffer_load_dword v{EPV}, v{vT2}, {s(SWS,4)}, 0 offen sc1", tag="clr")
        cpos = o.get("cpos", 100); wpos = o.get("wpos", 200)
        with self.rec() as c32:
            if not o.get("twa_early", 1): self.const_twa()
            self.const_f32()
        ins = sorted([(p_, it) for p_, it in ((cpos, clr1), (wpos, wld)) if p_ <= 100], key=lambda z: z[0])
        last = 0
        for p_, it in ins:
            cut = len(c32)*p_//100
            self.play(c32[last:cut]); self.play(it); last = cut
        self.play(c32[last:])
        with self.rec() as late_setup:
            R = self.R
            R(f"s_lshl_b32 s{sLNS}, s{sG}, 17"); R(f"s_lshr_b32 s{t4}, s{sMU}, 2"); R(f"s_lshl_b32 s{t4}, s{t4}, 15")
            R(f"s_add_u32 s{sLNS}, s{sLNS}, s{t4}"); R(f"s_and_b32 s{t4}, s{sMU}, 3"); R(f"s_lshl_b32 s{t4}, s{t4}, 7")
            R(f"s_add_u32 s{sLNS}, s{sLNS}, s{t4}"); R(f"s_add_u32 s{sLNS}, s{sLNS}, {LN2}")
            R(f"s_lshl_b32 s{t4}, s{sG}, 2"); R(f"s_add_u32 s{t4}, s{t4}, s{sW}"); R(f"s_lshl_b32 s{t4}, s{t4}, 4")
            R(f"s_add_u32 s{t4}, s{t4}, s{sMU}"); R(f"s_mul_i32 s{t4}, s{t4}, 7168"); R(f"s_add_u32 s{sHS}, s{t4}, {HB}")
            R(f"v_lshrrev_b32 v{vT0}, 5, v{vL}"); R(f"v_lshlrev_b32 v{vA4}, 12, v{vT0}"); R(f"v_lshlrev_b32 v{vA5}, 9, v{vT0}")
            R(f"v_bfe_u32 v{vT0}, v{vL}, 2, 2"); R(f"v_lshl_add_u32 v{vA4}, v{vT0}, 10, v{vA4}"); R(f"v_lshl_add_u32 v{vA5}, v{vT0}, 6, v{vA5}")
            R(f"v_bfe_u32 v{vT0}, v{vL}, 4, 1"); R(f"v_lshl_add_u32 v{vA4}, v{vT0}, 6, v{vA4}"); R(f"v_lshl_add_u32 v{vA5}, v{vT0}, 5, v{vA5}")
            R(f"v_and_b32 v{vT0}, 3, v{vL}"); R(f"v_lshl_add_u32 v{vA4}, v{vT0}, 4, v{vA4}"); R(f"v_lshl_add_u32 v{vA5}, v{vT0}, 3, v{vA5}")
            R(f"s_lshl_b32 s{sW2L}, s{sW}, 13"); R(f"s_add_u32 s{sW2L}, s{sW2L}, {L_ST}"); R(f"v_add_u32 v{vA5}, s{sW2L}, v{vA5}")
            R(f"s_mul_i32 s{sW2G}, s{sW}, {448*1024}"); R(f"s_and_b32 s{t4}, s{sMU}, 7"); R(f"s_lshl_b32 s{t4}, s{t4}, 7")
            R(f"s_add_u32 s{sW2G}, s{sW2G}, s{t4}")
            R(f"s_mul_i32 s{sW1L}, s{sW}, {4*7168}")
            R(f"s_mul_i32 s{sW1G}, s{sW}, {128*3584}"); R(f"s_mul_i32 s{t4}, s{sMU}, 224"); R(f"s_add_u32 s{sW1G}, s{sW1G}, s{t4}")
            R(f"v_and_b32 v{vT0}, 31, v{vL}"); R(f"v_lshrrev_b32 v{vT1}, 5, v{vL}")
            R(f"v_lshlrev_b32 v{vGA}, 13, v{vT0}"); R(f"v_lshl_add_u32 v{vGA}, v{vT1}, 4, v{vGA}")
        with self.rec() as w1map:
            R = self.R; G, un, rem, r_, cc = 216, 217, 218, 219, 220
            R(f"s_movk_i32 s{sJ}, 1171")
            for x in range(7):
                R(f"v_add_u32 v{G}, {64*x}, v{vL}"); R(f"v_mul_u32_u24 v{un}, s{sJ}, v{G}"); R(f"v_lshrrev_b32 v{un}, 16, v{un}")
                R(f"v_mul_u32_u24 v{rem}, 56, v{un}"); R(f"v_sub_u32 v{rem}, v{G}, v{rem}")
                R(f"v_cmp_le_u32 vcc, 48, v{rem}")
                R(f"v_bfe_u32 v{r_}, v{rem}, 2, 2"); R(f"v_bfe_u32 v{cc}, v{rem}, 1, 2"); R(f"v_cndmask_b32 v{r_}, v{r_}, v{cc}, vcc")
                R(f"v_and_b32 v{cc}, 3, v{rem}"); R(f"v_and_b32 v{G}, 1, v{rem}"); R(f"v_cndmask_b32 v{cc}, v{cc}, v{G}, vcc")
                R(f"v_lshrrev_b32 v{rem}, 4, v{rem}"); R(f"v_lshl_add_u32 v{cc}, v{rem}, 2, v{cc}")
                R(f"v_lshrrev_b32 v{G}, 1, v{un}"); R(f"v_lshl_add_u32 v{r_}, v{G}, 2, v{r_}")
                R(f"v_and_b32 v{G}, 1, v{un}"); R(f"v_lshl_add_u32 v{r_}, v{G}, 4, v{r_}")
                R(f"v_mul_u32_u24 v{r_}, 3584, v{r_}"); R(f"v_lshl_add_u32 v{W1A+x}, v{cc}, 4, v{r_}")
        R = self.R
        self.w1map = w1map; self.w1map_done = False
        if self.sch.get("W0"):
            self.play(late_setup); late_setup = []
            self.play(self.slot("W0"))
        R.wait(vm="x")
        self.stamp("x")
        if cpos == 200: self.play(clr1)
        if wpos == 200: self.play(wld)
        sa, qa, sb, qb = 110, 111, 112, 113
        for i in range(4):
            for (r, S_, Q_) in ((0, sa, qa), (1, sb, qb)):
                x = XR+4*r+i
                R(f"v_dot2_f32_bf16 v{S_}, v{x}, s{sONES}, {'0' if i == 0 else v(S_)}")
                R(f"v_dot2_f32_bf16 v{Q_}, v{x}, v{x}, {'0' if i == 0 else v(Q_)}")
        U = 130; fill = []
        for r in range(2):
            for i in range(4):
                fill.append(f"v_lshlrev_b32 v{U+8*r+i}, 16, v{XR+4*r+i}")
                fill.append(f"v_and_b32 v{U+8*r+4+i}, s{sMASK}, v{XR+4*r+i}")
        RR = 114
        self.ln_reduce(sa, qa, sb, qb, RR, fill)
        for r in range(2):
            for h in range(0, 8, 2):
                R(f"v_pk_fma_f32 {v(U+8*r+h,2)}, {v(U+8*r+h,2)}, {v(RR+2*r,2)}, {v(RR+2*r,2)} op_sel:[0,0,1] op_sel_hi:[1,0,1]")
        self.stamp("a_ln")
        OP = 122
        for p in range(2):
            for r in range(2):
                for h in range(2):
                    R(f"v_cvt_pk_bf16_f32 v{OP+4*p+2*r+h}, v{U+8*r+4*p+2*h}, v{U+8*r+4*p+2*h+1}")
        AC = 170
        for p in range(2):
            self.mm16(AC+4*p, OP+4*p, F16A+2, True); self.mm16(AC+8+4*p, OP+4*p, F16A+0, True)
        R(f"v_lshlrev_b32 v{vT2}, 9, v{vQ}"); R(f"v_lshl_add_u32 v{vT2}, v{vN}, 2, v{vT2}")
        R(f"s_lshl_b32 s{t0}, s{sW}, 11"); R(f"s_add_u32 s{t0}, s{t0}, {L_SA}"); R(f"v_add_u32 v{vT2}, s{t0}, v{vT2}")
        R(f"v_lshrrev_b32 v{vT0}, 1, v0"); R(f"v_add_u32 v{vT3}, 1, v{vT0}"); R(f"v_sub_u32 v{vT0}, 511, v{vT0}")
        TM = 186; Y = 130
        for p in range(2):
            for h in range(0, 4, 2):
                self.cmul_pk(Y+4*p+h, Y+8+4*p+h, AC+4*p+h, AC+8+4*p+h, TWA+4*p+h, TWA+8+4*p+h, TM, False)
        for p in range(2):
            for part in range(2):
                for h in range(2):
                    R(f"v_cvt_pk_bf16_f32 v{OP+4*p+2*part+h}, v{Y+8*part+4*p+2*h}, v{Y+8*part+4*p+2*h+1}")
        with self.rec() as m:
            for p in range(2):
                for T in range(2):
                    self.mm16(AC+4*T, self.f32w(T, p, "fr"), OP+4*p, p == 0)
                    self.mm16(AC+8+4*T, self.f32w(T, p, "fi"), OP+4*p, p == 0)
        with self.rec() as sd:
            R = self.R
            R(f"v_and_b32 v{vT1}, 1, v0"); R(f"v_cmp_eq_u32 vcc, 1, v{vT1}")
            R(f"v_add_u32 v{Y}, 128, v{vT3}"); R(f"v_subrev_u32 v{Y+1}, 128, v{vT0}")
            R(f"v_cndmask_b32 v{vT3}, v{vT3}, v{vT0}, vcc"); R(f"v_cndmask_b32 v{vT0}, v{Y}, v{Y+1}, vcc")
            R(f"v_lshlrev_b32 v{vT3}, 2, v{vT3}"); R(f"v_lshlrev_b32 v{vT0}, 2, v{vT0}")
            R(f"v_add_u32 v{vT3}, {L_SA}, v{vT3}"); R(f"v_add_u32 v{vT0}, {L_SA}, v{vT0}")
            R(f"s_lshl_b32 s{t0}, s{sP}, 6"); R(f"s_lshl_b32 s{t1}, s{sW}, 2"); R(f"s_add_u32 s{t0}, s{t0}, s{t1}"); R(f"s_add_u32 s{t0}, s{t0}, {F1}")
            R(f"v_mov_b32 v{vFL}, {hex(OOB)}"); R(f"v_mov_b32 v{vT1}, s{t0}")
            R(f"v_cmp_eq_u32 vcc, 0, v{vL}"); R(f"v_cndmask_b32 v{vFL}, v{vFL}, v{vT1}, vcc")
        R = self.R
        self.play(after_each(m, is_mfma, sd, 2))
        self.stamp("a_s2")
        for T in range(2):
            for i in range(4):
                R(f"v_cvt_pk_bf16_f32 v{Y+4*T+i}, v{AC+4*T+i}, v{AC+8+4*T+i}")
                R(f"ds_write_b32 v{vT2}, v{Y+4*T+i} offset:{128*i+64*T}", tag="a")
        R.wait(vm="clr")
        R(f"v_readfirstlane_b32 s{sTOK}, v{EPV}")
        R(f"v_add_u32 v{vT1}, 0x5bd1e995, v{EPV}")
        R(f"buffer_store_dword v{vT1}, v{vFL}, {s(SWS,4)}, 0 offen sc1", tag="f1s")
        R(f"s_add_u32 s{t5}, s{sTOK}, 1"); R(f"s_add_u32 s{sTOK}, s{sTOK}, 0x5bd1e995")
        R(f"s_add_u32 s{t1}, s{sX1S}, 4096")
        R.wait(lg="a")
        R("s_barrier")
        self.stamp("a_bar")
        D = 138
        for h, ad in ((0, vT3), (1, vT0)):
            R(f"ds_read2st64_b32 {v(D+4*h,2)}, v{ad} offset0:0 offset1:8", tag=f"a{h}")
            R(f"ds_read2st64_b32 {v(D+4*h+2,2)}, v{ad} offset0:16 offset1:24", tag=f"a{h}")
        R(f"s_lshl_b32 s{t0}, s{sW}, 10"); R(f"s_add_u32 s{t0}, s{t0}, {L_SB}"); R(f"v_add_u32 v{vT2}, s{t0}, v{vL16}")
        R.wait(lg="a0")
        R(f"buffer_store_dwordx4 {v(D,4)}, v{vA1}, {s(SWS,4)}, s{sX1S} offen sc1", tag="x1s")
        R.wait(lg="a1")
        R(f"buffer_store_dwordx4 {v(D+4,4)}, v{vA1}, {s(SWS,4)}, s{t1} offen sc1", tag="x1s")
        self.stamp("A_st")
        F64, TF, TI, WF, DZ, A1, A2 = 80, 144, 160, 176, 192, 224, 240
        FP = DZ
        if wpos == 300: self.play(wld)
        R(f"s_lshl_b32 s{t1}, s{sW}, 12"); R(f"s_add_u32 s{t1}, s{t1}, {F1}"); R(f"v_lshlrev_b32 v{vA0}, 6, v{vL}")
        f1load = f"buffer_load_dwordx4 {v(FP,4)}, v{vA0}, {s(SWS,4)}, s{t1} offen sc1"
        WO = 232
        A1t = 208
        with self.rec() as pre:
            R = self.R
            R(f"v_and_b32 v{vT0}, 31, v{vL}"); R(f"v_lshrrev_b32 v{vT1}, 5, v{vL}")
            R(f"v_lshlrev_b32 v{vGA}, 13, v{vT0}"); R(f"v_lshl_add_u32 v{vGA}, v{vT1}, 4, v{vGA}")
            R(f"s_lshl_b32 s{t0}, s{sW}, 19"); R(f"s_lshl_b32 s{t2}, s{sP}, 5"); R(f"s_add_u32 s{t0}, s{t0}, s{t2}")
            R(f"s_add_u32 s{t2}, s{t0}, {32*8192}")
            R(f"v_lshlrev_b32 v{vT3}, 9, v{vQ}"); R(f"v_bfe_u32 v{vT0}, v{vL}, 2, 2"); R(f"v_lshl_add_u32 v{vT3}, v{vT0}, 7, v{vT3}")
            R(f"v_and_b32 v{vT0}, 3, v{vL}"); R(f"v_lshl_add_u32 v{vT3}, v{vT0}, 3, v{vT3}")
            R(f"s_lshl_b32 s{t3}, s{sW}, 5"); R(f"s_add_u32 s{t3}, s{t3}, {L_SB}"); R(f"v_add_u32 v{vT3}, s{t3}, v{vT3}")
            self.play(late_setup)
        R = self.R
        wmove = [("w", "W", None), ("i", f"ds_write_b128 v{vT2}, {v(WRW,4)}", "w"), ("i", f"ds_write_b128 v{vT2}, {v(WRW+4,4)} offset:4096", "w")]
        with self.rec() as twb: self.const_twb(TF, TI, A1t)
        k = o.get("f1pos", 0)
        if k == 0: R(f1load, tag="f1p")
        self.play(pre); self.play(wmove)
        seq = spread(twb, self.slot("P1"))
        cut = len(seq)*k//100
        self.play(seq[:cut])
        if k: R(f1load, tag="f1p")
        self.play(seq[cut:])
        self.checked([f1load], list(range(FP, FP+4)), "f1p", ref=sTOK)
        R.wait(lg="w")
        R("s_barrier")
        self.stamp("F1")
        R.wait(vm="x1s")
        RW = A2
        lds = [f"buffer_load_dwordx4 {v(DZ,4)}, v{vGA}, {s(SWS,4)}, s{t0} offen sc1",
               f"buffer_load_dwordx4 {v(DZ+4,4)}, v{vGA}, {s(SWS,4)}, s{t2} offen sc1"]
        for l in lds: R(l, tag="x1p")
        for x in range(2):
            for arr in range(2):
                R(f"ds_read_b64_tr_b16 {v(WO+4*x+2*arr,2)}, v{vT3} offset:{4096*arr+2048*x}", tag=f"w{x}")
        R.wait(lg="w0")
        R(f"buffer_store_dwordx4 {v(WO,4)}, v{vA3}, {s(SWS,4)}, s{sWTS} offen sc1", tag="wts")
        R.wait(lg="w1")
        R(f"buffer_store_dwordx4 {v(WO+4,4)}, v{vA3}, {s(SWS,4)}, s{sWTS} offen offset:128 sc1", tag="wts")
        if self.stop == "A": return self.finish()
        R(f"v_lshrrev_b32 v{vT0}, 3, v0"); R(f"v_lshlrev_b32 v{vA3}, 9, v{vT0}")
        R(f"v_and_b32 v{vT0}, 7, v0"); R(f"v_lshl_add_u32 v{vA3}, v{vT0}, 4, v{vA3}")
        R(f"s_add_u32 s{sLN1}, s{sLNS}, 16384"); R(f"s_add_u32 s{sHS1}, s{sHS}, 4096")
        with self.rec() as c64: self.const_f64(F64)
        with self.rec() as ep:
            R = self.R
            R(f"v_mov_b32 v{vT0}, {hex(OOB)}"); R(f"v_mov_b32 v{vT1}, {hex(EP)}")
            R(f"s_cmp_eq_u32 s2, 0"); R(f"s_cselect_b32 s{sH0}, 0, -1")
            R(f"v_cmp_eq_u32 vcc, s{sH0}, v0")
            R(f"v_cndmask_b32 v{vT0}, v{vT0}, v{vT1}, vcc"); R(f"v_mov_b32 v{vT1}, s{t5}")
            R(f"buffer_store_dword v{vT1}, v{vT0}, {s(SWS,4)}, 0 offen", tag="eps")
        R = self.R
        self.play(spread(c64, [("g", ep, None)] + self.slot("Q1")))
        R(f"v_lshrrev_b32 v{vT0}, 2, v{vN}"); R(f"v_lshlrev_b32 v{vT2}, 7, v{vT0}"); R(f"v_and_b32 v{vT0}, 3, v{vN}")
        R(f"v_lshl_add_u32 v{vT2}, v{vT0}, 4, v{vT2}"); R(f"v_lshl_add_u32 v{vT2}, v{vQ}, 9, v{vT2}")
        R(f"s_lshr_b32 s{sO1}, s{sP}, 1"); R(f"s_lshl_b32 s{sO1}, s{sO1}, 14"); R(f"s_and_b32 s{t3}, s{sP}, 1"); R(f"s_lshl_b32 s{t3}, s{t3}, 6")
        R(f"s_add_u32 s{sO1}, s{sO1}, s{t3}"); R(f"s_lshl_b32 s{t3}, s{sW}, 12"); R(f"s_add_u32 s{sO1}, s{sO1}, s{t3}"); R(f"s_add_u32 s{sO1}, s{sO1}, {WT}")
        R(f"v_lshrrev_b32 v{vT0}, 5, v{vL}"); R(f"v_lshlrev_b32 v{vT0}, 12, v{vT0}")
        R(f"v_and_b32 v{vT1}, 31, v{vL}"); R(f"v_lshl_add_u32 v{vT0}, v{vT1}, 4, v{vT0}")
        R(f"s_lshl_b32 s{t3}, s{sW}, 10"); R(f"s_add_u32 s{t5}, s{t3}, {L_SA}"); R(f"v_add_u32 v{vA0}, s{t5}, v{vT0}")
        R(f"v_add_u32 v{vA1}, {L_SA}, v{vL16}")
        R(f"v_add_u32 v{vT3}, {L_SB}, v{vL16}"); R(f"v_add_u32 v{A2+8}, s{t3}, v{vT3}")
        self.checked(lds, list(range(DZ, DZ+8)), "x1p")
        self.stamp("X1")
        R(f"ds_write_b128 v{vA0}, {v(DZ,4)}", tag="b"); R(f"ds_write_b128 v{vA0}, {v(DZ+4,4)} offset:512", tag="b")
        wtl = [f"buffer_load_dwordx4 {v(RW,4)}, v{vT2}, {s(SWS,4)}, s{sO1} offen sc1",
               f"buffer_load_dwordx4 {v(RW+4,4)}, v{vT2}, {s(SWS,4)}, s{sO1} offen offset:2048 sc1"]
        for l in wtl: R(l, tag="wtp")
        R.wait(lg="b")
        R("s_barrier")
        self.stamp("b_bar1")
        for j in range(4):
            for wh in range(2):
                R(f"ds_read_b128 {v(DZ+16*wh+4*j,4)}, v{vA1} offset:{4096*wh+1024*j}", tag=f"b{j}")
        self.play(self.slot("B0"))
        with self.rec() as m:
            R = self.R
            for j in range(4):
                R.wait(lg=f"b{j}")
                self.mm16(A1+0, DZ+4*j, F64+16*j+0, j == 0); self.mm16(A1+4, DZ+4*j, F64+16*j+4, j == 0)
                self.mm16(A1+8, DZ+16+4*j, F64+16*j+8, j == 0); self.mm16(A1+12, DZ+16+4*j, F64+16*j+12, j == 0)
        R = self.R
        self.play(spread(m, self.slot('B1'), 0.1, 0.95))
        self.stamp("b_s1")
        Er, Ei, Or, Oi, TM = DZ, DZ+4, DZ+8, DZ+12, DZ+16
        ng = " neg_lo:[0,1] neg_hi:[0,1]"
        for h in (0, 2):
            R(f"v_pk_add_f32 {v(Er+h,2)}, {v(A1+h,2)}, {v(A1+8+h,2)}")
            R(f"v_pk_add_f32 {v(Ei+h,2)}, {v(A1+4+h,2)}, {v(A1+12+h,2)}" + ng)
            R(f"v_pk_add_f32 {v(Or+h,2)}, {v(A1+4+h,2)}, {v(A1+12+h,2)}")
            R(f"v_pk_add_f32 {v(Oi+h,2)}, {v(A1+8+h,2)}, {v(A1+h,2)}" + ng)
        for h in (0, 2):
            self.cmul_pk(A1+h, A1+4+h, Er+h, Ei+h, TF+h, TF+4+h, TM, False)
            self.cmul_pk(A1+8+h, A1+12+h, Or+h, Oi+h, TF+8+h, TF+12+h, TM+4, False)
        OP = DZ+24
        for r in range(8): R(f"v_cvt_pk_bf16_f32 v{OP+r}, v{A1+2*r}, v{A1+2*r+1}")
        with self.rec() as m:
            for p in range(2):
                for T in range(2):
                    self.mm16(A1+8*T, self.f32w(T, p, "fr"), OP+4*p, p == 0); self.mm16(A1+8*T+4, self.f32w(T, p, "fi"), OP+4*p, p == 0)
        self.play(spread(m, self.slot('B2'), 0.1, 1.0))
        self.stamp("b_s2")
        self.checked(wtl, list(range(RW, RW+8)), "wtp")
        for T in range(2):
            for i in range(4):
                for part in range(2):
                    src = RW + 4*(i >> 1) + 2*part + (i & 1); dst = WF + 8*part + 4*T + i
                    R(f"v_lshlrev_b32 v{dst}, 16, v{src}" if T == 0 else f"v_and_b32 v{dst}, s{sMASK}, v{src}")
        for T in range(2):
            for h in (0, 2):
                self.cmul_pk(DZ+8*T+h, DZ+8*T+4+h, A1+8*T+h, A1+8*T+4+h, WF+4*T+h, WF+8+4*T+h, TM+4*T, True)
        for r in range(8): R(f"v_cvt_pk_bf16_f32 v{OP+r}, v{DZ+2*r}, v{DZ+2*r+1}")
        with self.rec() as m:
            for T in range(2):
                for Uu in range(2):
                    self.mm16(A1+8*Uu, OP+4*T, self.f32w(Uu, T, "ir"), T == 0); self.mm16(A1+8*Uu+4, OP+4*T, self.f32w(Uu, T, "ii"), T == 0)
        self.play(spread(m, self.slot('B3'), 0.1, 1.0))
        self.stamp("b_s3")
        for Uu in range(2):
            for h in (0, 2):
                self.cmul_pk(DZ+8*Uu+h, DZ+8*Uu+4+h, A1+8*Uu+h, A1+8*Uu+4+h, TI+8*Uu+h, TI+8*Uu+4+h, TM+4*Uu, True)
        Pr, Pi, Qr, Qi = A1, A1+4, A1+8, A1+12
        for h in (0, 2):
            R(f"v_pk_add_f32 {v(Pr+h,2)}, {v(DZ+h,2)}, {v(DZ+12+h,2)}" + ng)
            R(f"v_pk_add_f32 {v(Pi+h,2)}, {v(DZ+4+h,2)}, {v(DZ+8+h,2)}")
        for i in range(4): R(f"v_cvt_pk_bf16_f32 v{OP+i}, v{Pr+i}, v{Pi+i}")
        R(f"ds_write_b128 v{A2+8}, {v(OP,4)}", tag="b")
        for h in (0, 2):
            R(f"v_pk_add_f32 {v(Qr+h,2)}, {v(DZ+h,2)}, {v(DZ+12+h,2)}")
            R(f"v_pk_add_f32 {v(Qi+h,2)}, {v(DZ+8+h,2)}, {v(DZ+4+h,2)}" + ng)
        for i in range(4): R(f"v_cvt_pk_bf16_f32 v{OP+4+i}, v{Qr+i}, v{Qi+i}")
        R(f"ds_write_b128 v{A2+8}, {v(OP+4,4)} offset:4096", tag="b")
        R.wait(lg="b")
        R("s_barrier")
        self.stamp("b_bar2")
        for j in range(4):
            for wh in range(2):
                R(f"ds_read_b128 {v(DZ+16*wh+4*j,4)}, v{vT3} offset:{4096*wh+1024*j}", tag=f"b{j}")
        with self.rec() as m:
            R = self.R
            for j in range(4):
                R.wait(lg=f"b{j}")
                self.mm16(A1+0, F64+16*j+8, DZ+4*j, j == 0); self.mm16(A1+4, F64+16*j+12, DZ+4*j, j == 0)
                self.mm16(A1+8, F64+16*j+0, DZ+16+4*j, j == 0); self.mm16(A1+12, F64+16*j+4, DZ+16+4*j, j == 0)
        R = self.R
        self.play(spread(m, self.slot('B4'), 0.1, 0.95))
        self.stamp("b_s4")
        assert "l" in self.done and "g" in self.done
        R.wait(vm="clrl")
        R("s_nop 7")
        def nyq(E):
            ls = E.newlabel("L_nonyq")
            E(f"s_cmp_lg_u32 s{sP}, 255"); E(f"s_cbranch_scc1 {ls}")
            for r in range(8):
                E(f"v_add_f32 v{A1+r}, v{A1+r}, v{A1+8+r}"); E(f"v_mul_f32 v{A1+r}, 0.5, v{A1+r}"); E(f"v_mov_b32 v{A1+8+r}, 0")
            E.label(ls)
        self.call(nyq)
        for i in range(4):
            R(f"v_cvt_pk_bf16_f32 v{DZ+i}, v{A1+i}, v{A1+4+i}"); R(f"v_cvt_pk_bf16_f32 v{DZ+4+i}, v{A1+8+i}, v{A1+12+i}")
        for i in range(4): R(f"v_permlane32_swap_b32 v{DZ+i}, v{DZ+4+i}")
        R(f"buffer_store_dwordx4 {v(DZ,4)}, v{vA2}, {s(SWS,4)}, s{sX2S} offen sc1", tag="x2s")
        R(f"buffer_store_dwordx4 {v(DZ+4,4)}, v{vA2}, {s(SWS,4)}, s{sX2S} offen offset:1024 sc1", tag="x2s")
        self.stamp("B_st")
        if self.stop == "B": return self.finish()
        F16C, XF, DC, AC, Y, OP, TM, CLC = 80, 88, 104, 112, 128, 144, 152, 156
        FP = 168
        R(f"s_lshl_b32 s{t2}, s{sW}, 12"); R(f"s_add_u32 s{t2}, s{t2}, {F1}"); R(f"v_lshlrev_b32 v{vT3}, 6, v{vL}")
        f2load = f"buffer_load_dwordx4 {v(FP,4)}, v{vT3}, {s(SWS,4)}, s{t2} offen offset:16 sc1"
        R(f2load, tag="f2p")
        R(f"v_lshlrev_b32 v{vT2}, 6, v{vN}"); R(f"v_lshl_add_u32 v{vT2}, v{vQ}, 3, v{vT2}")
        for r in range(2):
            for T in range(2):
                R(f"buffer_load_dwordx2 {v(XC+4*r+2*T,2)}, v{vT2}, {s(SX,4)}, s{t6} offen offset:{1024*r+32*T}", tag="xc")
        with self.rec() as cc:
            R = self.R
            self.const_f16(F16C, True)
            for h, dst in ((0, vA0), (1, vA1)):
                R(f"s_lshl_b32 s{t0}, s{sW}, 5"); R(f"s_add_u32 s{t0}, s{t0}, {128*h}")
                R(f"v_and_b32 v{vT0}, 31, v{vL}"); R(f"v_add_u32 v{vT0}, s{t0}, v{vT0}")
                R(f"v_sub_u32 v{vT1}, 511, v{vT0}")
                R(f"v_cmp_eq_u32 vcc, 255, v{vT0}"); R(f"v_add_u32 v{vT0}, 1, v{vT0}"); R(f"v_cndmask_b32 v{vT1}, v{vT1}, 0, vcc")
                R(f"v_cmp_le_u32 vcc, 32, v{vL}"); R(f"v_mov_b32 v{dst}, {L_SA}"); R(f"v_cndmask_b32 v{vT0}, v{vT0}, v{vT1}, vcc")
                R(f"v_and_b32 v{vT1}, 1, v{vT0}"); R(f"v_lshl_add_u32 v{dst}, v{vT1}, 10, v{dst}")
                R(f"v_lshrrev_b32 v{vT1}, 7, v{vT0}"); R(f"v_lshl_add_u32 v{dst}, v{vT1}, 8, v{dst}")
                R(f"v_bfe_u32 v{vT1}, v{vT0}, 1, 4"); R(f"v_lshl_add_u32 v{dst}, v{vT1}, 4, v{dst}")
                R(f"v_bfe_u32 v{vT1}, v{vT0}, 5, 2"); R(f"v_lshl_add_u32 v{dst}, v{vT1}, 2, v{dst}")
            R(f"s_lshl_b32 s{t0}, s{sW}, 18"); R(f"s_lshl_b32 s{t1}, s{sG}, 9"); R(f"s_add_u32 s{t0}, s{t0}, s{t1}")
            R(f"s_lshl_b32 s{t1}, s{sMU}, 5"); R(f"s_add_u32 s{t0}, s{t0}, s{t1}"); R(f"s_add_u32 s{t0}, s{t0}, {X2}")
            R(f"s_add_u32 s{t1}, s{t0}, {128*8192}")
        R = self.R
        self.play(spread(cc, self.slot("P2")))
        self.checked([f2load], list(range(FP, FP+4)), "f2p", ref=sTOK)
        R("s_barrier")
        self.play(self.slot("P2b"))
        R.wait(vm=["x2s", "xc"])
        lds = [f"buffer_load_dwordx4 {v(DC,4)}, v{vGA}, {s(SWS,4)}, s{t0} offen sc1",
               f"buffer_load_dwordx4 {v(DC+4,4)}, v{vGA}, {s(SWS,4)}, s{t1} offen sc1"]
        for l in lds: R(l, tag="x2p")
        with self.rec() as cc:
            R = self.R
            for r in range(2):
                for T in range(2):
                    for h in range(2):
                        R(f"v_lshlrev_b32 v{XF+8*r+4*T+2*h}, 16, v{XC+4*r+2*T+h}")
                        R(f"v_and_b32 v{XF+8*r+4*T+2*h+1}, s{sMASK}, v{XC+4*r+2*T+h}")
            R(f"s_lshl_b32 s{t2}, s{sW}, 11"); R(f"s_add_u32 s{t2}, s{t2}, {L_SA}"); R(f"v_add_u32 v{vT2}, s{t2}, v{vL16}")
        R = self.R
        self.play(spread(cc, self.slot("Q2")))
        self.checked(lds, list(range(DC, DC+8)), "x2p")
        self.stamp("X2")
        for h, ad in ((0, vA0), (1, vA1)):
            for rho in range(4): R(f"ds_write_b32 v{ad}, v{DC+4*h+rho} offset:{2048*rho}", tag="c")
        R.wait(lg="c")
        R("s_barrier")
        self.stamp("c_bar1")
        R(f"ds_read_b128 {v(DC,4)}, v{vT2}", tag="c0"); R(f"ds_read_b128 {v(DC+4,4)}, v{vT2} offset:1024", tag="c1")
        self.play(self.slot("C0"))
        R(f"v_lshlrev_b32 v{vT0}, 2, v{vN}"); R(f"v_add_u32 v{vT0}, v{vT0}, v{vQ}"); R(f"v_lshlrev_b32 v{vT0}, 7, v{vT0}")
        R(f"s_lshl_b32 s{t0}, s{sW}, 1"); R(f"v_and_b32 v{vT1}, 7, v{vN}"); R(f"v_xor_b32 v{vT1}, s{t0}, v{vT1}")
        R(f"v_lshl_add_u32 v{vA0}, v{vT1}, 4, v{vT0}"); R(f"v_add_u32 v{vA0}, {L_SB}, v{vA0}"); R(f"v_xor_b32 v{vA1}, 16, v{vA0}")
        for p in range(2):
            R.wait(lg=f"c{p}")
            self.mm16(AC+4*p, DC+4*p, F16C, True); self.mm16(AC+8+4*p, DC+4*p, F16C+4, True)
        R(f"v_lshrrev_b32 v{vT0}, 5, v0"); R(f"v_xor_b32 v{vT0}, v{vT0}, v0"); R(f"v_and_b32 v{vT0}, 7, v{vT0}")
        R(f"v_lshrrev_b32 v{vT1}, 3, v0"); R(f"v_lshlrev_b32 v{vT1}, 7, v{vT1}"); R(f"v_lshl_add_u32 v{vT3}, v{vT0}, 4, v{vT1}")
        R(f"v_add_u32 v{vT3}, {L_SB}, v{vT3}")
        for p in range(2):
            for h in (0, 2):
                self.cmul_pk(Y+4*p+h, Y+8+4*p+h, AC+4*p+h, AC+8+4*p+h, TWA+4*p+h, TWA+8+4*p+h, TM, True)
        for p in range(2):
            for part in range(2):
                for h in range(2):
                    R(f"v_cvt_pk_bf16_f32 v{OP+4*p+2*part+h}, v{Y+8*part+4*p+2*h}, v{Y+8*part+4*p+2*h+1}")
        with self.rec() as m:
            for p in range(2):
                for T in range(2):
                    self.mm16(AC+4*T, OP+4*p, self.f32w(T, p, "ir"), p == 0); self.mm16(AC+8+4*T, OP+4*p, self.f32w(T, p, "ii"), p == 0)
        self.play(spread(m, self.slot('C1'), 0.1, 1.0))
        self.stamp("c_s2")
        R(f"v_lshlrev_b32 v{vT2}, 6, v{vN}"); R(f"v_and_b32 v{vT1}, 1, v{vQ}"); R(f"v_lshl_add_u32 v{vT2}, v{vT1}, 5, v{vT2}")
        R(f"v_lshrrev_b32 v{vT1}, 1, v{vQ}"); R(f"v_lshl_add_u32 v{vT2}, v{vT1}, 4, v{vT2}")
        R(f"s_add_u32 s{t0}, s{t6}, {HR}")
        H = AC
        for r in range(0, 16, 2): R(f"v_pk_add_f32 {v(H+r,2)}, {v(H+r,2)}, {v(XF+r,2)}")
        sa, qa, sb, qb, RR = Y, Y+1, Y+2, Y+3, Y+12
        for r, (S_, Q_) in enumerate(((sa, qa), (sb, qb))):
            b = H+8*r; u = Y+4+4*r
            R(f"v_pk_add_f32 {v(u,2)}, {v(b,2)}, {v(b+2,2)}"); R(f"v_pk_mul_f32 {v(u+2,2)}, {v(b,2)}, {v(b,2)}")
            R(f"v_pk_add_f32 {v(u,2)}, {v(u,2)}, {v(b+4,2)}"); R(f"v_pk_fma_f32 {v(u+2,2)}, {v(b+2,2)}, {v(b+2,2)}, {v(u+2,2)}")
            R(f"v_pk_add_f32 {v(u,2)}, {v(u,2)}, {v(b+6,2)}"); R(f"v_pk_fma_f32 {v(u+2,2)}, {v(b+4,2)}, {v(b+4,2)}, {v(u+2,2)}")
            R(f"v_add_f32 v{S_}, v{u}, v{u+1}"); R(f"v_pk_fma_f32 {v(u+2,2)}, {v(b+6,2)}, {v(b+6,2)}, {v(u+2,2)}")
            R(f"v_add_f32 v{Q_}, v{u+2}, v{u+3}")
        HBF = DC
        fill = [f"v_cvt_pk_bf16_f32 v{HBF+r}, v{H+2*r}, v{H+2*r+1}" for r in range(8)]
        self.ln_reduce(sa, qa, sb, qb, RR, fill)
        for r in range(2):
            for h in range(0, 8, 2):
                R(f"v_pk_fma_f32 {v(H+8*r+h,2)}, {v(H+8*r+h,2)}, {v(RR+2*r,2)}, {v(RR+2*r,2)} op_sel:[0,0,1] op_sel_hi:[1,0,1]")
            for h in range(4): R(f"v_cvt_pk_bf16_f32 v{OP+4*r+h}, v{H+8*r+2*h}, v{H+8*r+2*h+1}")
            R(f"ds_write_b128 v{vA0 if r == 0 else vA1}, {v(OP+4*r,4)}", tag="c")
        for r in range(2):
            R(f"v_permlane16_swap_b32 v{HBF+4*r}, v{HBF+4*r+2}"); R(f"v_permlane16_swap_b32 v{HBF+4*r+1}, v{HBF+4*r+3}")
        R.wait(lg="c")
        R("s_barrier")
        self.stamp("c_bar2")
        R(f"ds_read_b128 {v(Y,4)}, v{vT3}", tag="c0"); R(f"ds_read_b128 {v(Y+4,4)}, v{vT3} offset:4096", tag="c1")
        assert self.hn == 7
        R.wait(vm="clrh", lg="c0")
        R(f"buffer_store_dwordx4 {v(Y,4)}, v{vA3}, {s(SWS,4)}, s{sLNS} offen sc1", tag="lns")
        R.wait(lg="c1")
        R(f"buffer_store_dwordx4 {v(Y+4,4)}, v{vA3}, {s(SWS,4)}, s{sLN1} offen sc1", tag="lns")
        R(f"buffer_store_dwordx4 {v(HBF,4)}, v{vT2}, {s(SWS,4)}, s{t0} offen sc1", tag="hrs")
        R(f"buffer_store_dwordx4 {v(HBF+4,4)}, v{vT2}, {s(SWS,4)}, s{t0} offen offset:1024 sc1", tag="hrs")
        self.stamp("C_st")
        if self.stop == "C": return self.finish()
        ACC, LN, WFR, GT = 64, 128, 16, 40
        B1R = 16
        R(f"v_lshrrev_b32 v{vT0}, 5, v{vL}"); R(f"v_lshlrev_b32 v{vT0}, 3, v{vT0}")
        R(f"s_mul_i32 s{t0}, s{sMU}, 224")
        for g4 in range(14):
            R(f"buffer_load_dwordx2 {v(B1R+2*g4,2)}, v{vT0}, {s(SB1,4)}, s{t0} offen offset:{16*g4}", tag="b1")
        with self.rec() as cc:
            R = self.R
            R(f"v_lshrrev_b32 v{vT0}, 5, v{vL}"); R(f"v_mul_u32_u24 v{vT0}, 1792, v{vT0}")
            R(f"v_and_b32 v{vT1}, 3, v{vL}"); R(f"v_lshl_add_u32 v{vT0}, v{vT1}, 3, v{vT0}")
            R(f"v_bfe_u32 v{vT1}, v{vL}, 2, 2"); R(f"v_lshl_add_u32 v{vT2}, v{vT1}, 5, v{vT0}")
            R(f"v_lshl_add_u32 v{vA0}, v{vT1}, 6, v{vT0}")
            R(f"v_bfe_u32 v{vT1}, v{vL}, 4, 1"); R(f"v_lshl_add_u32 v{vA0}, v{vT1}, 5, v{vA0}")
            R(f"v_add_u32 v{vA1}, 57344, v{vA0}"); R(f"v_add_u32 v{vT3}, 57344, v{vT2}")
            R(f"s_lshl_b32 s{t0}, s{sG}, 17"); R(f"s_lshl_b32 s{t1}, s{sW}, 15"); R(f"s_add_u32 s{t0}, s{t0}, s{t1}")
            R(f"s_add_u32 s{t0}, s{t0}, {LN2}")
            for b in range(8): R(f"s_add_u32 s{40+b}, s{t0}, {4096*b}")
            for r in range(56, 64): R(f"v_mov_b32 v{ACC+r}, 0")
            R(f"s_lshl_b32 s{t1}, s{sG}, 2"); R(f"s_lshr_b32 s{t2}, s{sMU}, 3"); R(f"s_lshl_b32 s{t2}, s{t2}, 1"); R(f"s_add_u32 s{t1}, s{t1}, s{t2}")
            R(f"s_lshl_b32 s{t1}, s{t1}, 4"); R(f"s_lshl_b32 s{t2}, s{sW}, 2"); R(f"s_add_u32 s{t1}, s{t1}, s{t2}")
            R(f"s_mul_i32 s{t1}, s{t1}, 7168"); R(f"s_add_u32 s{sH0}, s{t1}, {HB}"); R(f"s_add_u32 s{sH1}, s{sH0}, {16*7168}")
            R(f"s_lshl_b32 s{sO0}, s{sG}, 7"); R(f"s_lshr_b32 s{t1}, s{sMU}, 3"); R(f"s_lshl_b32 s{t1}, s{t1}, 4"); R(f"s_add_u32 s{sO0}, s{sO0}, s{t1}")
            R(f"s_lshl_b32 s{t1}, s{sW}, 1"); R(f"s_add_u32 s{sO0}, s{sO0}, s{t1}"); R(f"s_lshl_b32 s{sO0}, s{sO0}, 10")
            R(f"s_and_b32 s{t1}, s{sMU}, 7"); R(f"s_lshl_b32 s{t7}, s{t1}, 7"); R(f"s_add_u32 s{sO0}, s{sO0}, s{t7}")
            R(f"s_add_u32 s{sO1}, s{sO0}, {8*1024}"); R(f"s_add_u32 s{sR0}, s{sO0}, {HR}"); R(f"s_add_u32 s{sR1}, s{sO1}, {HR}")
            R(f"v_lshlrev_b32 v{vA2}, 15, v{vQ}"); R(f"v_bfe_u32 v{vT0}, v{vL}, 3, 1"); R(f"v_lshl_add_u32 v{vA2}, v{vT0}, 10, v{vA2}")
            R(f"v_and_b32 v{vT0}, 7, v{vL}"); R(f"v_lshlrev_b32 v{vA3}, 4, v{vT0}"); R(f"v_add_u32 v{vA2}, v{vA2}, v{vA3}")
            k2 = -2.0*math.sqrt(2.0/math.pi)*math.log2(math.e); k1 = k2*0.044715
            R(f"s_mov_b32 s{t2}, {lit(k1)}"); R(f"s_mov_b32 s{t3}, {lit(k1)}")
            R(f"v_mov_b32 v{GT+20}, {lit(k2)}"); R(f"v_mov_b32 v{GT+21}, {lit(k2)}")
        R = self.R
        self.play(spread(cc, self.slot("P3")))
        self.sch["rest"] = ["a28"]; self.play(self.slot("rest"))
        R.wait(vm="b1")
        for g4 in range(14):
            for h in range(2):
                R(f"v_lshlrev_b32 v{ACC+4*g4+2*h}, 16, v{B1R+2*g4+h}"); R(f"v_and_b32 v{ACC+4*g4+2*h+1}, s{sMASK}, v{B1R+2*g4+h}")
        self.play(self.slot("P3b"))
        nlate = sum(1 for k_ in ("Q3", "G1", "G2") for z in self.sch.get(k_, []) if z == "b")
        while self.w2n < 7 - nlate:
            self.sch["fb"] = ["r", "b", "r"]; self.play(self.slot("fb"))
        self.stamp("pf")
        R.wait(vm=["w1", "lns", "hrs"])
        R("s_barrier")
        lnl = [[f"buffer_load_dwordx4 {v(LN+16*b+4*x,4)}, v{vL16}, {s(SWS,4)}, s{40+b} offen offset:{1024*x} sc1" for x in range(4)] for b in range(8)]
        for b in range(8):
            for l in lnl[b]: R(l, tag=f"ln{b}")
        self.play(self.slot("Q3"))
        self.g1g2(ACC, LN, WFR, GT, lnl)
        return self.finish()
    def g1g2(self, ACC, LN, WFR, GT, lnl):
        R = self.R; o = self.o
        n2 = o.get("early", 12)
        late = [(ks, U_) for ks in range(32) for U_ in (2, 3)]
        jobs = []
        nxt = 0
        for ks in range(32):
            jobs += [(ks, 0), (ks, 1)]
            if nxt < n2 and late[nxt][0] <= ks and nxt*32 <= ks*n2: jobs.append(late[nxt]); nxt += 1
        p1 = len(jobs)
        jobs += late[nxt:]
        LA = o.get("la", 5); RING = LA+1
        def rd(j):
            ks, Uu = jobs[j]
            ad = (vA0, vA1)[ks >= 16] if Uu < 3 else (vT2, vT3)[ks >= 16]
            return [("i", f"ds_read_b64_tr_b16 {v(WFR+4*(j%RING)+2*e2,2)}, v{ad} offset:{(ks%16)*3584+e2*896+Uu*256}", f"j{j}") for e2 in range(2)]
        def hstore(u, reg):
            return ("i", f"buffer_store_dwordx4 {v(reg,4)}, v{vL16}, {s(SWS,4)}, s{sHS if u < 4 else sHS1} offen offset:{1024*(u%4)} sc1", "hs")
        def gelu_plain(u):
            b = ACC+8*u; g = GT+1; ob = GT+12+4*(u & 1); L = []
            I = lambda t: L.append(("i", t, None))
            for h in range(8): I(f"v_mul_f32 v{g+h}, v{b+h}, v{b+h}")
            for h in range(8): I(f"v_fma_f32 v{g+h}, v{g+h}, s{t2}, v{GT+20}")
            for h in range(8): I(f"v_mul_f32 v{g+h}, v{g+h}, v{b+h}")
            for h in range(8): I(f"v_exp_f32 v{g+h}, v{g+h}")
            for h in range(8): I(f"v_add_f32 v{g+h}, 1.0, v{g+h}")
            for h in range(8): I(f"v_rcp_f32 v{g+h}, v{g+h}")
            for h in range(8): I(f"v_mul_f32 v{g+h}, v{g+h}, v{b+h}")
            for h in range(4): I(f"v_cvt_pk_bf16_f32 v{ob+h}, v{g+2*h}, v{g+2*h+1}")
            L.append(hstore(u, ob))
            return L
        def gelu_pk(u):
            b = ACC+8*u; g = GT+2; ob = GT+12+4*(u & 1); L = []
            I = lambda t: L.append(("i", t, None))
            for h in range(0, 8, 2): I(f"v_pk_mul_f32 {v(g+h,2)}, {v(b+h,2)}, {v(b+h,2)}")
            for h in range(0, 8, 2): I(f"v_pk_fma_f32 {v(g+h,2)}, {v(g+h,2)}, s[{t2}:{t2+1}], {v(GT+20,2)}")
            for h in range(0, 8, 2): I(f"v_pk_mul_f32 {v(g+h,2)}, {v(g+h,2)}, {v(b+h,2)}")
            for h in range(8): I(f"v_exp_f32 v{g+h}, v{g+h}")
            for h in range(0, 8, 2): I(f"v_pk_add_f32 {v(g+h,2)}, {v(g+h,2)}, 1.0 op_sel_hi:[1,0]")
            for h in range(8): I(f"v_rcp_f32 v{g+h}, v{g+h}")
            for h in range(0, 8, 2): I(f"v_pk_mul_f32 {v(g+h,2)}, {v(g+h,2)}, {v(b+h,2)}")
            for h in range(4): I(f"v_cvt_pk_bf16_f32 v{ob+h}, v{g+2*h}, v{g+2*h+1}")
            L.append(hstore(u, ob))
            return L
        order = [(u, a_, tau) for u in range(4) for a_ in range(4) for tau in range(2)]
        order += [(u, a_, 0) for u in range(4, 7) for a_ in range(4)] + [(u, a_, 1) for u in range(4, 7) for a_ in range(4)]
        HF = LN
        def hload_txt(li, pre=True):
            u, a_, tau = order[li]; ks = 7*a_+u
            return [f"s_add_u32 s{t0}, s{sH0 if tau == 0 else sH1}, {ks*1024}",
                    f"buffer_load_dwordx4 {v(HF+4*(li%32),4)}, v{vL16}, {s(SWS,4)}, s{t0} offen sc1"]
        def hload(li):
            t = hload_txt(li)
            return ("g", [("i", t[0], None), ("i", t[1], f"h{li}")], None)
        for j in range(LA): self.play(rd(j))
        checked_b = set()
        pend = []
        def ln_check(b):
            tests = self.test_items(list(range(LN+16*b, LN+16*b+16)), GT)
            return tests
        shadow = []; nsh = o.get("nshadow", 2)
        g1side = self.slot("G1")
        for u in range(nsh): shadow += gelu_plain(u)
        shadow = spread(shadow, g1side)
        first_ok = {0: p1+2, 1: p1+2, 2: p1+2, 3: p1+2, 4: len(jobs)}
        budget_c = o.get("budget", 12)
        sh_u = 0; done_items = 0
        for j, (ks, Uu) in enumerate(jobs):
            b = ks//4
            if b not in checked_b:
                R.wait(vm=f"ln{b}")
                t = ln_check(b)
                for x in t: R(x)
                self.branch_retry(lnl[b], t)
                checked_b.add(b)
                if b == 0: self.stamp("LN")
            if j + LA < len(jobs): self.play(rd(j+LA))
            R.wait(lg=f"j{j}")
            self.mm32(ACC+16*Uu, v(WFR+4*(j % RING), 4), v(LN+4*ks, 4))
            if j == p1-1: self.stamp("G1p1")
            if j >= p1+2:
                bud = budget_c
                while shadow and bud > 0:
                    it = shadow.pop(0); self.play([it]); bud -= cost(it)
        self.stamp("G1mm")
        tail = shadow
        for u in range(nsh, 7): tail += gelu_pk(u)
        WA = 16; EPI = 28
        with self.rec() as setup:
            R = self.R
            R(f"v_and_b32 v{vT2}, 31, v{vL}"); R(f"v_lshrrev_b32 v{vT3}, 5, v{vL}"); R(f"v_xor_b32 v{vT3}, v{vT3}, v{vT2}")
            R(f"v_and_b32 v{vT3}, 7, v{vT3}"); R(f"v_lshlrev_b32 v{vT3}, 4, v{vT3}"); R(f"v_lshl_add_u32 v{vT2}, v{vT2}, 8, v{vT3}")
            R(f"s_lshl_b32 s{t1}, s{sW}, 13"); R(f"v_add_u32 v{vT2}, s{t1}, v{vT2}")
            for x in range(4): R(f"v_xor_b32 v{WA+x}, {32*x}, v{vT2}")
            R(f"v_lshrrev_b32 v{vT2}, 3, v{vL}"); R(f"v_lshrrev_b32 v{vT3}, 3, v{vA3}"); R(f"v_xor_b32 v{vT3}, v{vT3}, v{vT2}")
            R(f"v_lshlrev_b32 v{vT3}, 4, v{vT3}"); R(f"v_lshl_add_u32 v{vT3}, v{vT2}, 8, v{vT3}")
            R(f"s_lshl_b32 s{t1}, s{sW}, 11"); R(f"v_add_u32 v{WA+4}, s{t1}, v{vT3}"); R(f"v_xor_b32 v{WA+5}, 16, v{WA+4}")
            for x in range(6): R(f"v_add_u32 v{WA+6+x}, {L_ST}, v{WA+x}")
        R = self.R
        h0 = o.get("h0", 30); h1 = o.get("h1", 85); npre = o.get("npre", 16)
        tl = spread(tail, [hload(li) for li in range(8)], h0/100, min(1.0, h0/100+0.15))
        tl = spread(tl, [hload(li) for li in range(8, npre)], h1/100, 1.0)
        if o.get("g2wait"): tl = tail
        self.play(setup)
        self.play(tl)
        self.stamp("G1_st")
        if o.get("g2wait"):
            R.wait(vm="hs"); R("s_barrier")
            for _ in range(o["g2wait"]): R("s_sleep 16")
            self.play([hload(li) for li in range(npre)])
        self.sch["fb"] = ["r"]; self.play(self.slot("G2")); self.play(self.slot("fb"))
        assert self.w2n == 7 and self.w2pend is None
        R.wait(lg="w2r6")
        issued = npre; LH = o.get("lh", 16)
        GB = 4
        def hcheck(gi):
            regs = [HF+4*(li % 32)+r for li in range(gi*GB, gi*GB+GB) for r in range(4)]
            tests = self.test_items(regs, vT0)
            loads = []
            for li in range(gi*GB, gi*GB+GB): loads += hload_txt(li)
            return tests, loads
        side = []
        RD = ACC
        HX, B2F, OUTR = 40, 48, 56
        def red_write(tau):
            wa = WA+6 if tau == 0 else WA
            return [("i", f"ds_write_b128 v{wa+a4}, {v(ACC+32*tau+16*V+4*a4,4)} offset:{128*V}", f"r{tau}") for V in range(2) for a4 in range(4)]
        def red_read(tau, dst):
            ra = WA+10 if tau == 0 else WA+4
            return [("i", f"ds_read_b128 {v(dst+8*src+4*x,4)}, v{ra+x} offset:{8192*src}", f"q{tau}{src}") for src in range(4) for x in range(2)]
        def epi_pre(tau):
            L = []
            for r in range(4):
                L.append(("i", f"v_lshlrev_b32 v{HX+2*r}, 16, v{EPI+4*tau+r}", None)); L.append(("i", f"v_and_b32 v{HX+2*r+1}, s{sMASK}, v{EPI+4*tau+r}", None))
            return L
        def epi_sum(tau, dst, pk):
            L = []
            if pk:
                for h in range(0, 8, 2): L.append(("i", f"v_pk_add_f32 {v(HX+h,2)}, {v(HX+h,2)}, {v(B2F+h,2)}", None))
            else:
                for h in range(8): L.append(("i", f"v_add_f32 v{HX+h}, v{HX+h}, v{B2F+h}", None))
            for src in range(4):
                L.append(("w", None, f"q{tau}{src}"))
                if pk:
                    for h in range(0, 8, 2): L.append(("i", f"v_pk_add_f32 {v(HX+h,2)}, {v(HX+h,2)}, {v(dst+8*src+h,2)}", None))
                else:
                    for h in range(8): L.append(("i", f"v_add_f32 v{HX+h}, v{HX+h}, v{dst+8*src+h}", None))
            for r in range(4): L.append(("i", f"v_cvt_pk_bf16_f32 v{OUTR+4*tau+r}, v{HX+2*r}, v{HX+2*r+1}", None))
            L.append(("i", f"buffer_store_dwordx4 {v(OUTR+4*tau,4)}, v{vA2}, {s(SOUT,4)}, s{sO0 if tau == 0 else sO1} offen", "out"))
            return L
        R.wait(vm=f"h{GB-1}")
        t, lds = hcheck(0)
        for x in t: R(x)
        self.branch_retry(lds, t)
        self.stamp("H0")
        last0 = max(li for li, (u, a_, tau) in enumerate(order) if tau == 0)
        for li, (u, a_, tau) in enumerate(order):
            ks = 7*a_+u
            nxt_tests = None
            if li % GB == 0 and li + GB < 56:
                nxt_tests = hcheck(li//GB+1)
            self.mm32(ACC+32*tau, a((ks*2)*4, 4), v(HF+4*(li % 32), 4), u == 0 and a_ == 0)
            if issued < 56 and issued < li + LH + 1:
                self.play([hload(issued)]); issued += 1
            bud = 16
            while side and bud > 0:
                it = side.pop(0); self.play([it]); bud -= max(cost(it), 4)
            self.mm32(ACC+32*tau+16, a((ks*2+1)*4, 4), v(HF+4*(li % 32), 4), u == 0 and a_ == 0)
            if li % GB == GB-1 and li + 1 < 56:
                gi = li//GB+1
                R.wait(vm=f"h{gi*GB+GB-1}")
                if not o.get("nochk"):
                    t, lds = hcheck(gi)
                    for x in t: R(x)
                    self.branch_retry(lds, t)
            else:
                bud = 20
                while side and bud > 0:
                    it = side.pop(0); self.play([it]); bud -= max(cost(it), 4)
            if li == 7:
                R("s_barrier")
                R(f"buffer_load_dwordx4 {v(EPI,4)}, v{vA2}, {s(SWS,4)}, s{sR0} offen sc1", tag="epi")
                R(f"buffer_load_dwordx4 {v(EPI+4,4)}, v{vA2}, {s(SWS,4)}, s{sR1} offen sc1", tag="epi")
                R(f"buffer_load_dwordx4 {v(EPI+8,4)}, v{vA3}, {s(SB2,4)}, s{t7} offen", tag="epi")
            if li == 30:
                side += [("w", "epi", None)]
                for r in range(4):
                    side.append(("i", f"v_lshlrev_b32 v{B2F+2*r}, 16, v{EPI+8+r}", None)); side.append(("i", f"v_and_b32 v{B2F+2*r+1}, s{sMASK}, v{EPI+8+r}", None))
                side += epi_pre(0)
            if li == (last0 + 2 if not o.get("noovl") else 55):
                side += red_write(0) + [("w", None, "r0"), ("i", "s_barrier", None)] + red_read(0, RD) + epi_sum(0, RD, False) + epi_pre(1)
        self.play(side)
        self.stamp("G2mm")
        self.play(red_write(1))
        R.wait(lg="r1")
        R("s_barrier")
        self.play(red_read(1, LN))
        self.play(epi_sum(1, LN, True))
    def finish(self):
        R = self.E
        if self.prof:
            R.wait(vm="all")
            self.stamp("end")
            R(f"v_mov_b32 v{vT0}, 0")
            for i in range(self.nstamp): R(f"v_writelane_b32 v{vT0}, s{84+i}, {i}")
            R(f"s_sub_u32 s{sTO}, 200000, s{sTO}"); R(f"v_writelane_b32 v{vT0}, s{sTO}, 63")
            R(f"s_lshl_b32 s{t0}, s2, 2"); R(f"s_add_u32 s{t0}, s{t0}, s{sW}"); R(f"s_lshl_b32 s{t0}, s{t0}, 8")
            R(f"s_add_u32 s{t0}, s{t0}, {PROF}")
            R(f"v_lshlrev_b32 v{vT1}, 2, v{vL}")
            R(f"buffer_store_dword v{vT0}, v{vT1}, {s(SWS,4)}, s{t0} offen")
            if self.o.get("amp") is not None:
                i = self.names.index(self.o["amp"]); i0 = self.names.index(self.o.get("amp0", "start"))
                R(f"s_cmp_lg_u32 s2, 0"); R("s_cbranch_scc1 L_end")
                R(f"s_sub_u32 s{t0}, s{84+i}, s{84+i0}"); R(f"s_min_u32 s{t0}, s{t0}, 20000"); R(f"s_mul_i32 s{t0}, s{t0}, 10")
                R(f"s_mov_b32 s{t2}, 1000000")
                R.label("L_amp")
                R(f"s_memrealtime s[{sSTAMP}:{sSTAMP+1}]"); R("s_waitcnt lgkmcnt(0)")
                R(f"s_sub_u32 s{t1}, s{sSTAMP}, s{84+self.nstamp-1}")
                R(f"s_sub_u32 s{t2}, s{t2}, 1"); R("s_cbranch_scc1 L_end")
                R(f"s_cmp_lt_u32 s{t1}, s{t0}"); R("s_cbranch_scc1 L_amp")
        R.wait(vm="all", lg="all")
        R.label("L_end")
        R("s_endpgm")
        R.ool.append("L_code_end:")
        hdr = f"; @launch grid=(256,1,1) block=(256,1,1) lds={L_END}\n"
        hdr += '.amdgcn_target "amdgcn-amd-amdhsa--gfx950"\n.text\n'
        hdr += f".globl {KNAME}\n.p2align 8\n.type {KNAME},@function\n{KNAME}:\n"
        desc = f""".section .rodata,"a"
.p2align 6
.amdhsa_kernel {KNAME}
  .amdhsa_next_free_vgpr 512
  .amdhsa_next_free_sgpr 102
  .amdhsa_accum_offset 256
  .amdhsa_group_segment_fixed_size 0
  .amdhsa_kernarg_size 88
  .amdhsa_user_sgpr_count 2
  .amdhsa_user_sgpr_kernarg_segment_ptr 1
  .amdhsa_system_sgpr_workgroup_id_x 1
  .amdhsa_float_denorm_mode_32 3
.end_amdhsa_kernel
"""
        return hdr + R.text() + desc

if __name__ == "__main__":
    import argparse
    ap = argparse.ArgumentParser()
    ap.add_argument("-o", default="sequential_preLN__spectral_gfnet__mixer_channel_mlp__prompt.s")
    ap.add_argument("--prof", action="store_true")
    ap.add_argument("--stop", default=None)
    ap.add_argument("--opt", action="append", default=[])
    args = ap.parse_args()
    opts = {}
    for x in args.opt:
        kk, vv = x.split("=", 1)
        vv = vv.replace("/", ";").replace("~", "=") if kk == "sch" else vv
        opts[kk] = int(vv) if vv.lstrip("-").isdigit() else (tuple(int(z) for z in vv.split(":")) if ":" in vv else vv)
    k = K(prof=args.prof, stop=args.stop, opts=opts)
    txt = k.build()
    open(args.o, "w").write(txt)
    if args.prof: open(args.o + ".names", "w").write(" ".join(k.names))
    print("wrote", args.o, len(txt), "bytes; nops inserted:", k.E.nnop)
```
